```python
import torch

def _softmax(x, axis=-1):
    return torch.softmax(x, dim=axis)
def _gelu(x):
    return torch.nn.functional.gelu(x, approximate="tanh")
def _silu(x):
    return torch.nn.functional.silu(x)
def _sigmoid(x):
    return torch.sigmoid(x)
def _layernorm(x, axis=-1, eps=1e-5):
    m = x.mean(dim=axis, keepdim=True)
    v = x.var(dim=axis, keepdim=True, unbiased=False)
    return (x - m) / torch.sqrt(v + eps)
def _scatter_add(tgt, idx, src, axis=0):
    return tgt.clone().index_add_(axis, idx, src)
def _segment_sum(src, seg, n):
    out = torch.zeros((n,) + src.shape[1:], dtype=src.dtype)
    return out.index_add_(0, seg, src)
def _pad(x, pw):
    flat = tuple(v for pair in reversed(pw) for v in pair)
    return torch.nn.functional.pad(x, flat)

kernel_name = 'concat_heads__ssm_conv_s5__linear_kernel_hedgehog__prompt'

def setup_inputs():

    _w = (lambda a: (lambda t: t.to(torch.bfloat16) if t.is_floating_point() else t)(torch.as_tensor(a)))
    def _A_setup():
        B, S, D = 1, 2048, 512
        P = D
        Lambda_re = -0.5 * (lambda _x: torch.exp(torch.as_tensor(_x)))((lambda *s: torch.randn(*s, dtype=torch.bfloat16) * 0.8)(P))
        Lambda_im = (lambda *s: torch.randn(*s, dtype=torch.bfloat16) * 0.8)(P) * 1.0
        B_re = (lambda *s: torch.randn(*s, dtype=torch.bfloat16) * 0.8)(P, D) * (D ** -0.5)
        B_im = (lambda *s: torch.randn(*s, dtype=torch.bfloat16) * 0.8)(P, D) * (D ** -0.5)
        C_re = (lambda *s: torch.randn(*s, dtype=torch.bfloat16) * 0.8)(D, P) * (P ** -0.5)
        C_im = (lambda *s: torch.randn(*s, dtype=torch.bfloat16) * 0.8)(D, P) * (P ** -0.5)
        log_dt = (lambda *s: torch.randn(*s, dtype=torch.bfloat16) * 0.8)(P) * 0.3 - 2.0
        Dskip = (lambda *s: torch.randn(*s, dtype=torch.bfloat16) * 0.8)(D)
        return {
            "x": _w((lambda *s: torch.randn(*s, dtype=torch.bfloat16) * 0.05)(B, S, D)),
            "Lambda_re": _w(Lambda_re),
            "Lambda_im": _w(Lambda_im),
            "B_re": _w(B_re),
            "B_im": _w(B_im),
            "C_re": _w(C_re),
            "C_im": _w(C_im),
            "log_dt": _w(log_dt),
            "Dskip": _w(Dskip),
        }
    _A_in = _A_setup()

    def _B_setup():
        B, S, D, H = 1, 2048, 512, 32
        Dh = D // H
        return {
            "x": _w((lambda *s: torch.randn(*s, dtype=torch.bfloat16) * 0.4)(B, S, D)),
            "wqkv": _w((lambda *s: torch.randn(*s, dtype=torch.bfloat16) * 0.4)(D, 3 * D)),
            "w_phi": _w((lambda *s: torch.randn(*s, dtype=torch.bfloat16) * 0.4)(H, Dh, Dh) * (Dh ** -0.5)),
            "wo": _w((lambda *s: torch.randn(*s, dtype=torch.bfloat16) * 0.05)(D, D)),
        }
    _B_in = _B_setup()

    return {
        "A_x": _A_in["x"],
        "A_Lambda_re": _A_in["Lambda_re"],
        "A_Lambda_im": _A_in["Lambda_im"],
        "A_B_re": _A_in["B_re"],
        "A_B_im": _A_in["B_im"],
        "A_C_re": _A_in["C_re"],
        "A_C_im": _A_in["C_im"],
        "A_log_dt": _A_in["log_dt"],
        "A_Dskip": _A_in["Dskip"],
        "B_x": _B_in["x"],
        "B_wqkv": _B_in["wqkv"],
        "B_w_phi": _B_in["w_phi"],
        "B_wo": _B_in["wo"],
    }

def reference(A_x, A_Lambda_re, A_Lambda_im, A_B_re, A_B_im, A_C_re, A_C_im, A_log_dt, A_Dskip, B_x, B_wqkv, B_w_phi, B_wo):
    def _A_ref(x, Lambda_re, Lambda_im, B_re, B_im, C_re, C_im, log_dt, Dskip):
        Bsz, L, H = x.shape
        Lam = Lambda_re + 1j * Lambda_im
        Bmat = B_re + 1j * B_im
        Cmat = C_re + 1j * C_im
        dt = torch.exp(log_dt)
        Lam_bar = torch.exp(dt * Lam)
        B_bar = ((Lam_bar - 1.0) / Lam)[:, None] * Bmat
        Bu = torch.einsum("bld,pd->blp", x + 0j, B_bar)
        h = torch.zeros_like(Bu[:, 0, :])
        hs = []
        for t in range(L):
            h = Lam_bar[None, :] * h + Bu[:, t, :]
            hs.append(h)
        hseq = torch.stack(hs, 1)
        y = 2.0 * torch.einsum("blp,dp->bld", hseq, Cmat).real + x * Dskip[None, None, :]
        return y

    def _B_ref(x, wqkv, w_phi, wo):
        B, S, D = x.shape
        H = 32; Dh = D // H
        qkv = (lambda x, *d: x.permute(*d))((x @ wqkv).reshape(B, S, 3, H, Dh), 2, 0, 3, 1, 4)
        q, k, v = qkv[0], qkv[1], qkv[2]
        pq = torch.einsum("bhsd,hdf->bhsf", q, w_phi)
        pk = torch.einsum("bhsd,hdf->bhsf", k, w_phi)
        phi_q = torch.concatenate([_softmax(pq, axis=-1), _softmax(-pq, axis=-1)], axis=-1)
        phi_k = torch.concatenate([_softmax(pk, axis=-1), _softmax(-pk, axis=-1)], axis=-1)
        kv = torch.einsum("bhsf,bhsd->bhfd", phi_k, v)
        z  = torch.einsum("bhsf->bhf", phi_k)
        num = torch.einsum("bhqf,bhfd->bhqd", phi_q, kv)
        den = torch.einsum("bhqf,bhf->bhq", phi_q, z)[..., None] + 1e-6
        o = num / den
        return (lambda x, *d: x.permute(*d))(o, 0, 2, 1, 3).reshape(B, S, D) @ wo

    a = _A_ref(A_x, A_Lambda_re, A_Lambda_im, A_B_re, A_B_im, A_C_re, A_C_im, A_log_dt, A_Dskip)
    b = _B_ref(B_x, B_wqkv, B_w_phi, B_wo)
    return torch.concatenate([a, b], axis=-1)
```

```python
NAME = "concat_heads__ssm_conv_s5__linear_kernel_hedgehog__prompt"
class Asm:
    def __init__(self):
        self.lines = []
        self.uid = 0
    def __call__(self, s):
        for l in s.strip("\n").split("\n"):
            self.lines.append("    " + l.strip() if not l.strip().endswith(":") else l.strip())
    def label(self, n):
        self.lines.append(n + ":")
    def new_label(self, p="L"):
        self.uid += 1
        return f"{p}_{self.uid}"
    def raw(self, s):
        self.lines.append(s)
    def text(self):
        return "\n".join(self.lines) + "\n"

def kd(name, vgpr, accum, sgpr=102):
    return f""".section .rodata,"a"
.p2align 6
.amdhsa_kernel {name}
  .amdhsa_next_free_vgpr {vgpr}
  .amdhsa_next_free_sgpr {sgpr}
  .amdhsa_accum_offset {accum}
  .amdhsa_group_segment_fixed_size 0
  .amdhsa_kernarg_size 128
  .amdhsa_user_sgpr_count 2
  .amdhsa_user_sgpr_kernarg_segment_ptr 1
  .amdhsa_system_sgpr_workgroup_id_x 1
  .amdhsa_float_denorm_mode_32 3
.end_amdhsa_kernel
"""
def kstart(name):
    return f""".text
.globl {name}
.p2align 8
.type {name},@function
{name}:
"""
HEAD = '.amdgcn_target "amdgcn-amd-amdhsa--gfx950"\n'
```

```python
import re
TRANS = ("v_exp_f32","v_log_f32","v_rcp_f32","v_rsq_f32","v_sqrt_f32","v_sin_f32","v_cos_f32")
def regs(tok):
    tok = tok.strip()
    tok = re.sub(r"^(-|abs\(|\|)+", "", tok).rstrip(")|")
    m = re.fullmatch(r"([vas])(\d+)", tok)
    if m: return [(m.group(1), int(m.group(2)))]
    m = re.fullmatch(r"([vas])\[(\d+):(\d+)\]", tok)
    if m: return [(m.group(1), i) for i in range(int(m.group(2)), int(m.group(3)) + 1)]
    if tok == "vcc": return [("s", 106), ("s", 107)]
    if tok in ("vcc_lo",): return [("s", 106)]
    if tok in ("vcc_hi",): return [("s", 107)]
    if tok == "exec": return [("s", 126), ("s", 127)]
    if tok == "m0": return [("s", 124)]
    return []
def split_ops(s):
    out, depth, cur = [], 0, ""
    for ch in s:
        if ch in "[(": depth += 1
        if ch in "])": depth -= 1
        if ch == "," and depth == 0:
            out.append(cur); cur = ""
        else: cur += ch
    out.append(cur)
    return out
class I:
    pass
def parse(line):
    s = line.split(";")[0].strip()
    if not s or s.endswith(":") or s.startswith("."): return None
    p = s.split(None, 1)
    op = p[0]; rest = p[1] if len(p) > 1 else ""
    ops = split_ops(rest)
    last = ops[-1].strip().split()
    mods = last[1:] if last else []
    if last: ops[-1] = last[0]
    i = I(); i.op = op; i.mods = mods; i.w = set(); i.r = set(); i.srcc = set(); i.ab = set(); i.states = 1
    i.kind = "other"; i.storedata = set()
    R = [regs(o) for o in ops]
    if op == "s_nop":
        i.states = int(ops[0], 0) + 1; i.kind = "nop"
    elif op.startswith("v_mfma"):
        i.kind = "mfma"; i.w = set(R[0]); i.ab = set(R[1]) | set(R[2]); i.srcc = set(R[3]); i.r = i.ab | i.srcc
        i.passes = 8 if "32x32x16" in op else 4
        i.d0 = R[0]; i.c0 = R[3]
    elif op.startswith("v_"):
        i.kind = "valu"
        if op.startswith("v_cmp"):
            i.w = set(R[0]); i.r = set(sum(R[1:], []))
        elif op.startswith("v_permlane") and "swap" in op:
            i.w = set(R[0]) | set(R[1]); i.r = set(i.w)
        elif op in ("v_add_co_u32", "v_sub_co_u32", "v_addc_co_u32"):
            i.w = set(R[0]) | set(R[1]); i.r = set(sum(R[2:], []))
        else:
            i.w = set(R[0]); i.r = set(sum(R[1:], []))
            if op.startswith("v_fmac") or op.startswith("v_writelane") or op.startswith("v_dot2c"): i.r |= set(R[0])
        i.trans = op.replace("_e32", "").replace("_e64", "") in TRANS
        i.dpp = any(m.startswith(("row_", "quad_perm", "wave_")) for m in mods)
    elif op.startswith(("buffer_", "global_")):
        i.kind = "vmem"
        if op in ("buffer_inv", "buffer_wbl2"):
            pass
        elif "lds" in mods or "_lds_" in op:
            i.r = set(sum(R, [])) | {("s", 124)}; i.dma = True
        elif "load" in op:
            i.w = set(R[0]); i.r = set(sum(R[1:], []))
            if "d16" in op: i.r |= set(R[0])
        elif "atomic" in op and "sc0" in mods:
            i.w = set(R[0]); i.r = set(sum(R, []))
        else:
            i.r = set(sum(R, []))
            d = R[0] if op.startswith("buffer_") else R[1]
            if len(d) >= 3: i.storedata = set(d)
    elif op.startswith("ds_"):
        i.kind = "ds"
        if "read" in op or "permute" in op or "swizzle" in op:
            i.w = set(R[0]); i.r = set(sum(R[1:], []))
        else:
            i.r = set(sum(R, []))
    elif op.startswith("s_"):
        i.kind = "salu"
        if op.startswith(("s_cmp", "s_cbranch", "s_branch", "s_waitcnt", "s_barrier", "s_endpgm", "s_sleep", "s_setprio", "s_bitcmp")):
            i.r = set(sum(R, []))
        else:
            i.w = set(R[0]); i.r = set(sum(R[1:], []))
            if "saveexec" in op: i.w |= {("s", 126), ("s", 127)}
    return i
def need(p, c):
    n = 0
    vw = {x for x in p.w if x[0] in "va"}
    sw = {x for x in p.w if x[0] == "s"}
    EX = {("s", 126), ("s", 127)}
    if p.kind == "valu":
        if c.kind == "mfma" and vw & c.r: n = max(n, 2)
        if c.kind == "valu":
            if p.trans and vw & c.r: n = max(n, 1)
            if c.op.startswith(("v_readlane", "v_readfirstlane")) and vw & c.r: n = max(n, 1)
            if c.op.startswith("v_permlane") and vw & c.r: n = max(n, 2)
            if c.dpp and vw & c.r: n = max(n, 2)
            if sw & c.r:
                n = max(n, 4 if c.op.startswith(("v_readlane", "v_writelane")) else 2)
            if sw & EX and (c.dpp): n = max(n, 5)
        if c.kind == "vmem" and sw & c.r: n = max(n, 5)
        if c.kind == "salu" and sw & c.r: n = max(n, 1)
    if p.kind == "salu":
        if ("s", 124) in sw and c.kind == "vmem" and getattr(c, "dma", False): n = max(n, 1)
    if p.kind == "vmem" and p.storedata:
        if c.kind in ("valu", "mfma") and p.storedata & c.w: n = max(n, 2)
        elif p.storedata & c.w: n = max(n, 1)
    if p.kind == "mfma":
        P = p.passes
        big = {4: 8, 8: 12}[P]; ov = {4: 6, 8: 10}[P]; war = {4: 3, 8: 7}[P]
        if c.kind == "mfma":
            if p.w & c.ab: n = max(n, big)
            if p.w & c.srcc:
                if not (c.c0 == p.d0 and c.passes == p.passes): n = max(n, ov)
            elif p.w & c.w: n = max(n, big)
        elif c.kind in ("valu", "vmem", "ds"):
            if p.w & (c.r | c.w): n = max(n, big)
            if c.kind == "valu" and p.srcc & c.w: n = max(n, war)
    return n
def fix(lines, verbose=False):
    out = []; hist = []
    added = 0
    for ln in lines:
        ins = parse(ln)
        if ins is None:
            out.append(ln); continue
        req = 0; dist = 0
        for p in reversed(hist):
            if dist >= 20: break
            n = need(p, ins)
            if n - dist > req: req = n - dist
            dist += p.states
        if req > 0:
            nop = parse(f"s_nop {req-1}")
            out.append(f"    s_nop {req-1}   ; hz"); hist.append(nop); added += req
        out.append(ln); hist.append(ins)
        if len(hist) > 40: hist = hist[-24:]
    if verbose: print("hazard nops added:", added)
    return out
```

```python
import sys
from asmlib import *
import hazard

opt = dict(stamp=0, D=2, bmap=3)
for x in sys.argv[2:]:
    k, v = x.split("="); opt[k] = int(v)

H_OFF = 0
O_OFF = 4 << 20
E_OFF = 6 << 20
KV_OFF = (6 << 20) + 65536
KV_RB = 2304
KV_HEAD = 16 * KV_RB
STAMP_OFF = 64 << 20
LOG2E = 0x3fb8aa3b
INV2PI = 0x3e22f983

class G(Asm):
    def __init__(self):
        super().__init__()
        self.vm = []; self.lg = []; self.nstamp = 0
    def reset(self):
        self.vm = []; self.lg = []
    def vmop(self, s, tag):
        if len(self.vm) >= 61:
            self("s_waitcnt vmcnt(60)"); del self.vm[:len(self.vm) - 60]
        self(s); self.vm.append(tag)
    def dsop(self, s, tag):
        self(s); self.lg.append(tag)
    def _cnt(self, lst, tag, mx):
        idx = max(i for i, t in enumerate(lst) if t == tag) if tag in lst else None
        if idx is None: return None
        n = len(lst) - 1 - idx
        n = min(n, mx)
        del lst[:len(lst) - n]
        return n
    def wait(self, vm=None, lg=None):
        parts = []
        if vm is not None:
            if vm == "all": self.vm.clear(); parts.append("vmcnt(0)")
            else:
                n = self._cnt(self.vm, vm, 63)
                if n is not None: parts.append(f"vmcnt({n})")
        if lg is not None:
            if lg == "all": self.lg.clear(); parts.append("lgkmcnt(0)")
            else:
                n = self._cnt(self.lg, lg, 15)
                if n is not None: parts.append(f"lgkmcnt({n})")
        if parts: self("s_waitcnt " + " ".join(parts))
    def srd(self, b, lo, nbytes):
        self(f"s_mov_b32 s{b}, s{lo}\ns_mov_b32 s{b+1}, s{lo+1}\ns_mov_b32 s{b+2}, {nbytes}\ns_mov_b32 s{b+3}, 0x20000")
    def srd_off(self, b, lo, off, nbytes):
        self(f"s_add_u32 s{b}, s{lo}, {off}\ns_addc_u32 s{b+1}, s{lo+1}, 0\ns_mov_b32 s{b+2}, {nbytes}\ns_mov_b32 s{b+3}, 0x20000")
    def stamp(self, i):
        if opt['stamp']:
            self(f"s_memrealtime s[{70+2*i}:{71+2*i}]\ns_waitcnt lgkmcnt(0)"); self.lg.clear()
    def stamp_out(self, n, base):
        if opt['stamp']:
            L = self.new_label("Lso")
            self(f"s_cmp_lg_u32 s20, 0\ns_cbranch_scc1 {L}")
            self(f"s_lshl_b32 s52, s2, 7\ns_add_u32 s52, s52, {STAMP_OFF + base}\nv_mov_b32 v2, s52")
            for i in range(n):
                self(f"v_mov_b32 v3, s{70+2*i}\nbuffer_store_dword v3, v2, s[36:39], 0 offen offset:{4*i}")
            self.label(L)

def v(i, n=1):
    return f"v{i}" if n == 1 else f"v[{i}:{i+n-1}]"
def ar(i, n=1):
    return f"a{i}" if n == 1 else f"a[{i}:{i+n-1}]"
MF = "v_mfma_f32_32x32x16_bf16"

def tilemap(a, role):
    a("s_lshr_b32 s21, s2, 1\ns_and_b32 s21, s21, 3\ns_lshr_b32 s22, s2, 3")
    if role == 'A' or opt['bmap'] == 2:
        a("""
        s_lshl_b32 s50, s21, 2
        s_and_b32 s52, s22, 3
        s_add_u32 s50, s50, s52
        s_lshr_b32 s51, s22, 2
        s_lshl_b32 s55, s52, 1
        s_add_u32 s55, s55, s51
        s_and_b32 s55, s55, 7
        """)
    else:
        a("""
        s_and_b32 s50, s21, 1
        s_lshl_b32 s50, s50, 3
        s_and_b32 s52, s22, 7
        s_add_u32 s50, s50, s52
        s_lshr_b32 s51, s21, 1
        s_lshl_b32 s51, s51, 2
        s_lshr_b32 s53, s22, 3
        s_add_u32 s51, s51, s53
        s_lshl_b32 s55, s53, 1
        s_add_u32 s55, s55, s52
        s_and_b32 s55, s55, 7
        """)

def dma_list(c, S, stage, pieces):
    pre = f"s_add_u32 s56, s55, {c}\ns_and_b32 s56, s56, 7\ns_lshl_b32 s57, s56, 7\ns_mul_i32 s58, s56, {64*3072}"
    out = []
    for i, (vr, sr, kind, ls, li) in enumerate(pieces):
        s = (pre + "\n" if i == 0 else "") + f"s_add_u32 m0, s{ls}, {(c % S) * stage + li}\n"
        out.append((s, f"buffer_load_dwordx4 v{vr}, s[{sr}:{sr+3}], s{57 if kind == 'x' else 58} offen lds", ("ch", c)))
    return out

def gemm_loop(a, S, stage, pieces, addr_regs, reads, mfmas, early, mid_prologue, after_bar0):
    D = opt['D']
    for c in range(S):
        for s, ld, tag in dma_list(c, S, stage, pieces):
            a(s); a.vmop(ld, tag)
    mid_prologue()
    a.wait(vm=("ch", 0)); a("s_barrier")
    a.stamp(1)
    after_bar0()
    for n in range(D):
        reads(n % 4, n % (D + 1), n)
    pending = []
    for n in range(32):
        m = n + D
        if m < 32:
            if m % 4 == 0:
                c = m // 4
                for s, ld, tag in pending:
                    a(s); a.vmop(ld, tag)
                pending = []
                a.wait(vm=("ch", c), lg=("all" if early else None)); a("s_barrier")
                delta = stage if (c % S) != 0 else -(S - 1) * stage
                for r in addr_regs:
                    if delta > 0: a(f"v_add_u32 v{r}, {delta}, v{r}")
                    else: a(f"v_subrev_u32 v{r}, {-delta}, v{r}")
                nc = c - (1 if early else 2) + S
                if S <= nc < 8:
                    pending = dma_list(nc, S, stage, pieces)
            reads(m % 4, m % (D + 1), m)
        a.wait(lg=("rd", n))
        for q in mfmas(n % (D + 1), n == 0):
            a(q)
            if pending:
                s, ld, tag = pending.pop(0)
                a(s); a.vmop(ld, tag)
    assert not pending

def cmul(a, d, x, y, t=None):
    a(f"v_mul_f32 v{d}, v{x}, v{y}\nv_mul_f32 v{d+1}, v{x}, v{y+1}")
    a(f"v_fma_f32 v{d}, -v{x+1}, v{y+1}, v{d}\nv_fma_f32 v{d+1}, v{x+1}, v{y}, v{d+1}")
def cfma(a, d, x, y, z):
    a(f"v_fma_f32 v{d}, v{x}, v{y}, v{z}\nv_fma_f32 v{d+1}, v{x}, v{y+1}, v{z+1}")
    a(f"v_fma_f32 v{d}, -v{x+1}, v{y+1}, v{d}\nv_fma_f32 v{d+1}, v{x+1}, v{y}, v{d+1}")
def pkb(d, s, sel, x, z, neg=False):
    n = " neg_lo:[1,0,0] neg_hi:[1,0,0]" if neg else ""
    return f"v_pk_fma_f32 {v(d,2)}, {v(s,2)}, {v(x,2)}, {v(z,2)} op_sel:[{sel},0,0] op_sel_hi:[{sel},1,1]{n}"

def check_cleared(a, goff_sgpr, name):
    L = a.new_label("Lclr"); LD = a.new_label("Lclrd")
    a(f"s_mov_b32 s59, 0x40000\nv_mov_b32 v8, s{goff_sgpr}")
    a.label(L)
    a("buffer_load_dwordx4 v[4:7], v8, s[40:43], 0 offen sc1\ns_waitcnt vmcnt(0)")
    a.vm.clear()
    a("v_and_b32 v4, v4, v5\nv_and_b32 v6, v6, v7\nv_and_b32 v4, v4, v6\nv_cmp_ne_u32 vcc, 0x01010101, v4")
    a(f"s_cbranch_vccz {LD}\ns_sub_u32 s59, s59, 1\ns_cmp_eq_u32 s59, 0\ns_cbranch_scc1 {LD}\ns_sleep 2\ns_branch {L}")
    a.label(LD)

def signal_cleared(a, base):
    L = a.new_label("Lsg")
    a(f"s_cmp_lg_u32 s20, 0\ns_cbranch_scc1 {L}")
    a(f"s_lshl_b32 s52, s51, 4\ns_add_u32 s52, s52, s50\ns_add_u32 s52, s52, {base}\nv_mov_b32 v2, s52\nv_mov_b32 v3, 1\ns_mov_b64 exec, 1")
    a("buffer_store_byte v3, v2, s[40:43], 0 offen sc1\ns_mov_b64 exec, -1")
    a.label(L)

def role_A1(a):
    a.reset()
    S, stage = 5, 32768
    a("""
    s_load_dwordx2 s[4:5], s[0:1], 0
    s_load_dwordx4 s[8:11], s[0:1], 24
    s_load_dwordx4 s[12:15], s[0:1], 8
    s_load_dwordx2 s[16:17], s[0:1], 56
    s_load_dwordx4 s[44:47], s[0:1], 112
    """)
    tilemap(a, 'A')
    XA, BA = 16, 20
    ACC = 64; FR = 128
    LAM, C2, L16, L32, MU, MU8, WA, WB = 24, 26, 28, 30, 32, 34, 36, 38
    T = 44
    a("""
    v_lshrrev_b32 v2, 5, v1
    v_lshlrev_b32 v2, 5, v2
    v_bfe_u32 v3, v1, 3, 1
    v_lshl_add_u32 v2, v3, 4, v2
    v_bfe_u32 v3, v1, 4, 1
    v_add_u32 v2, v2, v3
    v_lshlrev_b32 v2, 10, v2
    v_and_b32 v3, 7, v1
    v_lshrrev_b32 v4, 4, v1
    v_xor_b32 v3, v3, v4
    v_lshlrev_b32 v3, 4, v3
    s_lshr_b32 s52, s20, 1
    s_lshl_b32 s52, s52, 6
    s_and_b32 s53, s20, 1
    s_lshl_b32 s53, s53, 3
    s_add_u32 s52, s52, s53
    s_lshl_b32 s53, s50, 7
    s_add_u32 s52, s52, s53
    s_lshl_b32 s52, s52, 10
    v_add3_u32 v10, v2, v3, s52
    v_xor_b32 v11, 64, v10
    v_add_u32 v11, 2048, v11
    v_add_u32 v12, 4096, v10
    v_add_u32 v13, 4096, v11
    """)
    a("""
    v_lshrrev_b32 v2, 3, v1
    v_lshlrev_b32 v2, 10, v2
    s_lshl_b32 s52, s51, 6
    s_lshl_b32 s53, s20, 4
    s_add_u32 s52, s52, s53
    s_lshl_b32 s52, s52, 10
    v_add3_u32 v14, v2, v3, s52
    v_xor_b32 v15, 64, v14
    v_add_u32 v15, 8192, v15
    s_lshl_b32 s60, s20, 12
    s_lshl_b32 s61, s20, 11
    v_and_b32 v9, 31, v1
    s_and_b32 s63, s20, 1
    s_lshl_b32 s63, s63, 5
    s_lshl_b32 s52, s51, 6
    s_add_u32 s52, s52, s63
    v_add_u32 v5, s52, v9
    v_lshlrev_b32 v5, 1, v5
    s_sub_u32 s62, 15, s50
    s_lshl_b32 s62, s62, 9
    v_and_b32 v6, 127, v0
    v_lshlrev_b32 v6, 2, v6
    v_mov_b32 v7, -1
    s_waitcnt lgkmcnt(0)
    """)
    a.vmop(f"global_load_ushort v{T}, v5, s[12:13]", "par")
    a.vmop(f"global_load_ushort v{T+1}, v5, s[14:15]", "par")
    a.vmop(f"global_load_ushort v{T+2}, v5, s[16:17]", "par")
    a.srd(24, 4, 2097152); a.srd(28, 8, 524288); a.srd(32, 10, 524288)
    a.srd(36, 46, 268435456); a.srd(40, 44, 256)
    a(f"s_lshl_b32 s52, s51, 13\ns_add_u32 s52, s52, {E_OFF}")
    a.srd_off(64, 46, "s52", 8192)
    a.vmop("buffer_store_dword v7, v6, s[64:67], s62 offen sc1", "clr")
    pieces = [(10 + i, 24, 'x', 60, i * 1024) for i in range(4)] + \
             [(14 + i, 28, 'x', 61, 16384 + i * 1024) for i in range(2)] + \
             [(14 + i, 32, 'x', 61, 16384 + 8192 + i * 1024) for i in range(2)]
    def mid():
        a(f"""
        v_lshrrev_b32 v3, 5, v1
        v_bfe_u32 v4, v1, 1, 3
        v_xor_b32 v3, v3, v4
        v_lshlrev_b32 v3, 4, v3
        v_lshl_add_u32 v3, v9, 7, v3
        s_lshr_b32 s52, s20, 1
        s_lshl_b32 s52, s52, 13
        s_lshl_b32 s53, s63, 7
        s_add_u32 s53, s53, 16384
        """)
        for ks in range(4):
            a(f"v_xor_b32 v4, {32*ks}, v3\nv_add_u32 v{XA+ks}, s52, v4\nv_add_u32 v{BA+ks}, s53, v4")
        a.wait(vm="par")
        Lr, Li, dt = T, T + 1, T + 2
        a(f"""
        v_lshlrev_b32 v{Lr}, 16, v{Lr}
        v_lshlrev_b32 v{Li}, 16, v{Li}
        v_lshlrev_b32 v{dt}, 16, v{dt}
        v_mul_f32 v{dt}, {LOG2E}, v{dt}
        v_exp_f32 v{dt}, v{dt}
        v_cvt_pk_bf16_f32 v{dt}, v{dt}, v{dt}
        v_lshlrev_b32 v{dt}, 16, v{dt}
        v_mul_f32 v{T+3}, v{dt}, v{Lr}
        v_mul_f32 v{T+4}, v{dt}, v{Li}
        v_mul_f32 v{T+3}, {LOG2E}, v{T+3}
        v_exp_f32 v{T+3}, v{T+3}
        v_mul_f32 v{T+4}, {INV2PI}, v{T+4}
        v_rndne_f32 v{T+5}, v{T+4}
        v_sub_f32 v{T+4}, v{T+4}, v{T+5}
        v_cos_f32 v{T+5}, v{T+4}
        v_sin_f32 v{T+6}, v{T+4}
        v_mul_f32 v{LAM}, v{T+3}, v{T+5}
        v_mul_f32 v{LAM+1}, v{T+3}, v{T+6}
        v_mul_f32 v{T+3}, v{Lr}, v{Lr}
        v_fma_f32 v{T+3}, v{Li}, v{Li}, v{T+3}
        v_rcp_f32 v{T+3}, v{T+3}
        v_add_f32 v{T+4}, -1.0, v{LAM}
        v_mul_f32 v{T+5}, v{T+4}, v{Lr}
        v_fma_f32 v{T+5}, v{LAM+1}, v{Li}, v{T+5}
        v_mul_f32 v{T+6}, v{LAM+1}, v{Lr}
        v_fma_f32 v{T+6}, -v{T+4}, v{Li}, v{T+6}
        v_add_f32 v{T+3}, v{T+3}, v{T+3}
        v_mul_f32 v{C2}, v{T+5}, v{T+3}
        v_mul_f32 v{C2+1}, v{T+6}, v{T+3}
        """)
        cmul(a, T, LAM, LAM); cmul(a, T + 2, T, T); cmul(a, T, T + 2, T + 2); cmul(a, L16, T, T)
        cmul(a, L32, L16, L16); cmul(a, T + 4, L32, L32)
        cmul(a, MU, T + 4, T + 4)
        cmul(a, T, MU, MU); cmul(a, T + 2, T, T); cmul(a, MU8, T + 2, T + 2)
        a(f"""
        v_cmp_lt_u32 vcc, 31, v1
        v_cndmask_b32 v{T}, 1.0, v{L32}, vcc
        v_cndmask_b32 v{T+1}, 0, v{L32+1}, vcc
        v_cmp_lt_u32 vcc, 127, v0
        v_cndmask_b32 v{T+2}, 1.0, v{T+4}, vcc
        v_cndmask_b32 v{T+3}, 0, v{T+5}, vcc
        """)
        cmul(a, T + 6, T, T + 2); cmul(a, T, T + 6, C2); cmul(a, T + 2, T, L16)
        a(f"v_mov_b32 v{WA}, v{T}\nv_mov_b32 v{WA+1}, v{T+2}\nv_mov_b32 v{WB}, v{T+1}\nv_mov_b32 v{WB+1}, v{T+3}")
    def reads(ks, b, n):
        f = FR + 16 * b
        a.dsop(f"ds_read_b128 {v(f,4)}, v{XA+ks}", ("rd", n))
        a.dsop(f"ds_read_b128 {v(f+8,4)}, v{BA+ks}", ("rd", n))
        a.dsop(f"ds_read_b128 {v(f+12,4)}, v{BA+ks} offset:8192", ("rd", n))
        a.dsop(f"ds_read_b128 {v(f+4,4)}, v{XA+ks} offset:4096", ("rd", n))
    def mfmas(b, first):
        f = FR + 16 * b
        out = []
        for i in range(2):
            for part in range(2):
                d = ACC + 32 * part + 16 * i
                out.append(f"{MF} {v(d,16)}, {v(f+4*i,4)}, {v(f+8+4*part,4)}, {'0' if first else v(d,16)}")
        return out
    gemm_loop(a, S, stage, pieces, list(range(XA, XA + 8)), reads, mfmas, False, mid, lambda: signal_cleared(a, 0))
    a.stamp(2)
    RE, IM = ACC, ACC + 32
    cur_r, cur_i = RE, IM
    for st in range(1, 16):
        nr = T + 4 * (st & 1); ni = nr + 2
        a(pkb(ni, LAM, 1, cur_r, IM + 2 * st))
        a(pkb(nr, LAM, 1, cur_i, RE + 2 * st, neg=True))
        a(pkb(nr, LAM, 0, cur_r, nr))
        a(pkb(ni, LAM, 0, cur_i, ni))
        cur_r, cur_i = nr, ni
    EA, EE = T + 8, T + 10
    a(f"v_mov_b32 v{EA}, v{cur_r}\nv_mov_b32 v{EA+1}, v{cur_i}\nv_mov_b32 v{EE}, v{cur_r+1}\nv_mov_b32 v{EE+1}, v{cur_i+1}")
    cfma(a, EE, L16, EA, EE)
    SCR = 98304
    a(f"""
    v_add_u32 v2, s63, v9
    v_lshlrev_b32 v2, 3, v2
    v_add_u32 v3, {SCR}, v2
    v_lshrrev_b32 v4, 5, v1
    v_lshlrev_b32 v4, 9, v4
    s_lshr_b32 s52, s20, 1
    s_lshl_b32 s52, s52, 10
    v_add3_u32 v4, v4, v3, s52
    """)
    a.dsop(f"ds_write_b64 v4, {v(EE,2)}", "e")
    a.wait(lg="all"); a("s_barrier")
    F = FR
    for b in range(4):
        a.dsop(f"ds_read_b64 {v(F+2*b,2)}, v3 offset:{512*b}", "e")
    a.wait(lg="all")
    cfma(a, F + 2, L32, F, F + 2); cfma(a, F + 4, L32, F + 2, F + 4); cfma(a, F + 6, L32, F + 4, F + 6)
    L = a.new_label("Lpub")
    a(f"v_min_u32 v{F+6}, 0xfffffffe, v{F+6}\nv_min_u32 v{F+7}, 0xfffffffe, v{F+7}")
    a(f"s_cmp_ge_u32 s20, 2\ns_cbranch_scc1 {L}\ns_mov_b32 exec_hi, 0")
    a(f"buffer_store_dwordx2 {v(F+6,2)}, v2, s[64:67], s62 offen sc1\ns_mov_b64 exec, -1")
    a.label(L)
    a.stamp(3)
    a(f"""
    v_cmp_lt_u32 vcc, 31, v1
    v_cndmask_b32 v{F+8}, 0, v{F}, vcc
    v_cndmask_b32 v{F+9}, 0, v{F+1}, vcc
    v_cndmask_b32 v{F+10}, v{F+2}, v{F+4}, vcc
    v_cndmask_b32 v{F+11}, v{F+3}, v{F+5}, vcc
    v_cmp_lt_u32 vcc, 127, v0
    v_cndmask_b32 v{F+8}, v{F+8}, v{F+10}, vcc
    v_cndmask_b32 v{F+9}, v{F+9}, v{F+11}, vcc
    """)
    cfma(a, EA, L16, F + 8, EA)
    cmul(a, F + 10, C2, F + 8); cmul(a, F + 12, C2, EA)
    PR, PI = T + 12, T + 14
    a(f"v_mov_b32 v{PR}, v{F+10}\nv_mov_b32 v{PR+1}, v{F+12}\nv_mov_b32 v{PI}, v{F+11}\nv_mov_b32 v{PI+1}, v{F+13}")
    for st in range(16):
        r_, i_ = RE + 2 * st, IM + 2 * st
        t = T + 2 * (st & 1)
        a(f"v_pk_mul_f32 {v(t,2)}, {v(C2,2)}, {v(r_,2)} op_sel:[1,0] op_sel_hi:[1,1]")
        a(f"v_pk_mul_f32 {v(r_,2)}, {v(C2,2)}, {v(r_,2)} op_sel:[0,0] op_sel_hi:[0,1]")
        a(pkb(r_, C2, 1, i_, r_, neg=True))
        a(pkb(i_, C2, 0, i_, t))
    a("s_lshl_b32 s54, s51, 4")
    check_cleared(a, 54, "A")
    a(f"v_lshrrev_b32 v4, 5, v1\nv_lshlrev_b32 v4, 12, v4\nv_add3_u32 v4, v4, v2, s62\nv_add_u32 v4, 512, v4")
    LP = a.new_label("Lpoll"); LD = a.new_label("Lpolld")
    a("s_mov_b32 s59, 0x40000")
    a.label(LP)
    for jj in range(8):
        a(f"buffer_load_dwordx2 {v(F+2*jj,2)}, v4, s[64:67], 0 offen offset:{512*jj} sc1")
    a("s_waitcnt vmcnt(0)"); a.vm.clear()
    a(f"v_max3_u32 v5, v{F}, v{F+1}, v{F+2}\nv_max3_u32 v6, v{F+3}, v{F+4}, v{F+5}")
    for q in range(6, 14, 4):
        a(f"v_max3_u32 v5, v5, v{F+q}, v{F+q+1}\nv_max3_u32 v6, v6, v{F+q+2}, v{F+q+3}")
    a(f"v_max3_u32 v5, v5, v{F+14}, v{F+15}\nv_max_u32 v5, v5, v6\nv_cmp_eq_u32 vcc, -1, v5")
    a(f"s_cbranch_vccz {LD}\ns_sub_u32 s59, s59, 1\ns_cmp_eq_u32 s59, 0\ns_cbranch_scc1 {LD}\ns_sleep 1\ns_branch {LP}")
    a.label(LD)
    a.stamp(4)
    for jj in range(6, -1, -1):
        d, s_ = F + 2 * jj, F + 2 * jj + 2
        a(pkb(d, MU, 0, s_, d))
        a(f"v_pk_fma_f32 {v(d,2)}, {v(MU,2)}, {v(s_,2)}, {v(d,2)} op_sel:[1,1,0] op_sel_hi:[1,0,1] neg_lo:[1,0,0]")
    a(f"v_mov_b32 v{F+2}, v{F}\nv_mov_b32 v{F+3}, v{F+1}")
    a(f"v_permlane32_swap_b32 v{F}, v{F+2}\nv_permlane32_swap_b32 v{F+1}, v{F+3}")
    cfma(a, F, MU8, F + 2, F)
    a(pkb(PR, F, 0, WA, PR)); a(pkb(PI, F, 0, WB, PI)); a(pkb(PR, F, 1, WB, PR, neg=True)); a(pkb(PI, F, 1, WA, PI))
    cur_r, cur_i = PR, PI
    for st in range(16):
        r_, i_ = RE + 2 * st, IM + 2 * st
        a(pkb(i_, LAM, 1, cur_r, i_))
        a(pkb(r_, LAM, 1, cur_i, r_, neg=True))
        a(pkb(r_, LAM, 0, cur_r, r_))
        a(pkb(i_, LAM, 0, cur_i, i_))
        cur_r, cur_i = r_, i_
    TS = SCR + 2048
    a(f"""
    s_mul_i32 s52, s20, 9216
    s_add_u32 s52, s52, {TS}
    v_mul_u32_u24 v2, 144, v9
    v_lshrrev_b32 v3, 5, v1
    v_lshlrev_b32 v4, 6, v3
    v_add3_u32 v2, v2, v4, s52
    v_bfe_u32 v4, v1, 2, 2
    v_lshl_add_u32 v4, v3, 3, v4
    v_mul_u32_u24 v4, 144, v4
    v_bfe_u32 v5, v1, 4, 1
    v_lshlrev_b32 v5, 5, v5
    v_and_b32 v6, 3, v1
    v_lshl_add_u32 v5, v6, 3, v5
    v_add3_u32 v3, v4, v5, s52
    """)
    k = 0
    for part in range(2):
        ng = "-" if part else ""
        for i in range(2):
            for ch in range(2):
                base = ACC + 32 * part + 16 * i + ch
                d = F + 4 * k; k += 1
                for q in range(4):
                    a(f"v_cvt_pk_bf16_f32 v{d+q}, {ng}v{base+4*q}, {ng}v{base+4*q+2}")
                a.dsop(f"ds_write_b128 v2, {v(d,4)} offset:{part*32*144 + (16*ch + 8*i)*2}", "tw")
    a(f"""
    s_lshl_b32 s52, s50, 2
    s_and_b32 s53, s20, 2
    s_add_u32 s52, s52, s53
    s_lshl_b32 s52, s52, 6
    s_lshl_b32 s53, s51, 2
    s_add_u32 s52, s52, s53
    s_and_b32 s53, s20, 1
    s_lshl_b32 s53, s53, 1
    s_add_u32 s52, s52, s53
    s_lshl_b32 s52, s52, 10
    s_add_u32 s52, s52, {H_OFF}
    v_lshlrev_b32 v4, 4, v1
    """)
    a.wait(lg="all")
    G0 = ACC
    k = 0; frs = []
    for Tt in range(2):
        for part in range(2):
            for pg in range(2):
                d = G0 + 4 * k
                for ab in range(2):
                    a.dsop(f"ds_read_b64_tr_b16 {v(d+2*ab,2)}, v3 offset:{(part*32 + 16*pg + 4*ab)*144 + 64*Tt}", ("tr", k))
                frs.append((k, d, Tt, part, pg)); k += 1
    for k, d, Tt, part, pg in frs:
        a(f"s_add_u32 s53, s52, {(Tt*64 + part*32)*1024}")
        a.wait(lg=("tr", k))
        a.vmop(f"buffer_store_dwordx4 {v(d,4)}, v4, s[36:39], s53 offen offset:{pg*1024}", "h")
    a.stamp(5)
    a.stamp_out(6, 0)

def softmax_units(a, units, tmp):
    seqs = []
    for u, (P, O) in enumerate(units):
        t = tmp + 4 * u
        s = []
        s.append(f"v_max3_f32 v{t}, v{P}, v{P+1}, v{P+2}")
        s.append(f"v_max3_f32 v{t+1}, v{P+3}, v{P+4}, v{P+5}")
        s.append(f"v_max3_f32 v{t}, v{t}, v{P+6}, v{P+7}")
        s.append(f"v_max3_f32 v{t+1}, v{t+1}, v{P+8}, v{P+9}")
        s.append(f"v_max3_f32 v{t}, v{t}, v{P+10}, v{P+11}")
        s.append(f"v_max3_f32 v{t+1}, v{t+1}, v{P+12}, v{P+13}")
        s.append(f"v_max3_f32 v{t}, v{t}, v{P+14}, v{P+15}")
        s.append(f"v_max_f32 v{t}, v{t}, v{t+1}")
        s.append(f"v_mul_f32 v{t}, s69, v{t}")
        for q in range(8):
            s.append(f"v_pk_fma_f32 {v(P+2*q,2)}, {v(P+2*q,2)}, s[68:69], {v(t,2)} op_sel:[0,0,0] op_sel_hi:[1,0,0]")
        for q in range(16):
            s.append(f"v_exp_f32 v{P+q}, v{P+q}")
        s.append(f"v_pk_add_f32 {v(t,2)}, {v(P,2)}, {v(P+2,2)}")
        s.append(f"v_pk_add_f32 {v(t+2,2)}, {v(P+4,2)}, {v(P+6,2)}")
        s.append(f"v_pk_add_f32 {v(t,2)}, {v(t,2)}, {v(P+8,2)}")
        s.append(f"v_pk_add_f32 {v(t+2,2)}, {v(t+2,2)}, {v(P+10,2)}")
        s.append(f"v_pk_add_f32 {v(t,2)}, {v(t,2)}, {v(P+12,2)}")
        s.append(f"v_pk_add_f32 {v(t+2,2)}, {v(t+2,2)}, {v(P+14,2)}")
        s.append(f"v_pk_add_f32 {v(t,2)}, {v(t,2)}, {v(t+2,2)}")
        s.append(f"v_add_f32 v{t}, v{t}, v{t+1}")
        s.append(f"v_rcp_f32 v{t}, v{t}")
        for q in range(8):
            s.append(f"v_pk_mul_f32 {v(P+2*q,2)}, {v(P+2*q,2)}, {v(t,2)} op_sel:[0,0] op_sel_hi:[1,0]")
        for q in range(8):
            s.append(f"v_cvt_pk_bf16_f32 v{O+q}, v{P+2*q}, v{P+2*q+1}")
        seqs.append(s)
    for i in range(len(seqs[0])):
        for s in seqs:
            a(s[i])

def role_B1(a):
    a.reset()
    S, stage = 4, 40960
    a("""
    s_load_dwordx4 s[4:7], s[0:1], 72
    s_load_dwordx2 s[8:9], s[0:1], 88
    s_load_dwordx4 s[44:47], s[0:1], 112
    """)
    tilemap(a, 'B')
    XA, WAD = 20, 24
    ACC = 64; FR = 160
    WP = 28
    a("""
    v_lshrrev_b32 v2, 3, v1
    v_and_b32 v3, 7, v1
    v_lshrrev_b32 v4, 4, v1
    v_xor_b32 v5, v3, v4
    v_lshlrev_b32 v5, 4, v5
    v_lshl_add_u32 v5, v2, 10, v5
    s_lshl_b32 s52, s50, 7
    s_lshl_b32 s53, s20, 5
    s_add_u32 s52, s52, s53
    s_lshl_b32 s52, s52, 10
    v_add_u32 v10, s52, v5
    v_xor_b32 v11, 64, v10
    v_add_u32 v11, 8192, v11
    v_add_u32 v12, 16384, v10
    v_add_u32 v13, 16384, v11
    """)
    a("""
    v_and_b32 v4, 1, v4
    v_lshlrev_b32 v4, 2, v4
    v_xor_b32 v4, v3, v4
    v_lshlrev_b32 v4, 4, v4
    v_mul_u32_u24 v5, 3072, v2
    s_lshl_b32 s52, s51, 7
    s_mul_i32 s53, s20, 49152
    s_add_u32 s52, s52, s53
    v_add3_u32 v14, v4, v5, s52
    v_add_u32 v15, 24576, v14
    v_add_u32 v16, 1024, v14
    v_add_u32 v17, 1024, v15
    v_add_u32 v18, 2048, v14
    v_add_u32 v19, 2048, v15
    s_lshl_b32 s60, s20, 12
    s_lshl_b32 s61, s20, 11
    v_and_b32 v9, 31, v1
    s_and_b32 s63, s20, 1
    s_lshr_b32 s62, s20, 1
    """)
    a(f"""
    s_lshl_b32 s48, s51, 2
    s_lshl_b32 s52, s63, 1
    s_add_u32 s48, s48, s52
    s_add_u32 s49, s48, s62
    s_mul_i32 s52, s49, {KV_HEAD}
    s_add_u32 s52, s52, {KV_OFF}
    s_mul_i32 s54, s50, {KV_RB}
    v_lshlrev_b32 v26, 4, v1
    v_lshlrev_b32 v27, 2, v1
    v_mov_b32 v4, -1
    v_mov_b32 v5, -1
    v_mov_b32 v6, -1
    v_mov_b32 v7, -1
    s_mov_b32 s68, {LOG2E}
    s_mov_b32 s69, {LOG2E | 0x80000000}
    s_waitcnt lgkmcnt(0)
    """)
    a.srd(24, 4, 2097152); a.srd(28, 6, 1572864)
    a.srd(36, 46, 268435456); a.srd(40, 44, 256)
    a.srd_off(64, 46, "s52", KV_HEAD)
    a.vmop("buffer_store_dwordx4 v[4:7], v26, s[64:67], s54 offen sc1", "clr")
    a.vmop("buffer_store_dwordx4 v[4:7], v26, s[64:67], s54 offen offset:1024 sc1", "clr")
    a.vmop("buffer_store_dword v4, v27, s[64:67], s54 offen offset:2048 sc1", "clr")
    pieces = [(10 + i, 24, 'x', 60, i * 1024) for i in range(4)]
    for seg in range(3):
        for i in range(2):
            pieces.append((14 + 2 * seg + i, 28, 'w', 61, 16384 + seg * 8192 + i * 1024))
    def mid():
        a(f"""
        v_lshrrev_b32 v2, 3, v9
        v_and_b32 v3, 3, v9
        v_lshl_add_u32 v2, v2, 2, v3
        v_lshlrev_b32 v2, 1, v2
        v_lshrrev_b32 v3, 5, v1
        v_lshl_add_u32 v2, v3, 7, v2
        s_lshl_b32 s52, s48, 9
        v_add_u32 v2, s52, v2
        """)
        for h in range(2):
            for j in range(8):
                d = 8 * (j >> 2) + (j & 3)
                a.vmop(f"global_load_ushort v{36+8*h+j}, v2, s[8:9] offset:{h*512 + d*32}", "wp")
        a(f"""
        v_bfe_u32 v4, v1, 1, 3
        v_xor_b32 v4, v3, v4
        v_lshlrev_b32 v4, 4, v4
        v_lshl_add_u32 v4, v9, 7, v4
        s_lshl_b32 s52, s62, 13
        """)
        for ks in range(4):
            a(f"v_xor_b32 v5, {32*ks}, v4\nv_add_u32 v{XA+ks}, s52, v5")
        a(f"""
        v_bfe_u32 v4, v1, 2, 2
        v_lshl_add_u32 v5, v3, 3, v4
        v_lshlrev_b32 v5, 7, v5
        v_lshrrev_b32 v4, 1, v4
        v_xor_b32 v4, s63, v4
        v_lshl_add_u32 v5, v4, 6, v5
        v_bfe_u32 v4, v1, 4, 1
        v_lshl_add_u32 v5, v4, 5, v5
        v_and_b32 v4, 3, v1
        v_lshl_add_u32 v5, v4, 3, v5
        v_add_u32 v{WAD}, 16384, v5
        """)
    def reads(ks, b, n):
        f = FR + 20 * b
        a.dsop(f"ds_read_b128 {v(f,4)}, v{XA+ks}", ("rd", n))
        for seg in (1, 2, 0):
            for ab in range(2):
                a.dsop(f"ds_read_b64_tr_b16 {v(f+8+4*seg+2*ab,2)}, v{WAD} offset:{seg*8192 + ks*2048 + ab*512}", ("rd", n))
            if seg == 1:
                a.dsop(f"ds_read_b128 {v(f+4,4)}, v{XA+ks} offset:4096", ("rd", n))
    def mfmas(b, first):
        f = FR + 20 * b
        out = []
        for seg in (1, 2, 0):
            for i in range(2):
                d = ACC + 32 * seg + 16 * i
                x, w = v(f + 4 * i, 4), v(f + 8 + 4 * seg, 4)
                A_, B_ = (x, w) if seg == 2 else (w, x)
                out.append(f"{MF} {v(d,16)}, {A_}, {B_}, {'0' if first else v(d,16)}")
        return out
    gemm_loop(a, S, stage, pieces, list(range(XA, XA + 5)), reads, mfmas, True, mid, lambda: signal_cleared(a, 128))
    a.stamp(2)
    Q, Kk, V = ACC, ACC + 32, ACC + 64
    a.wait(vm="wp")
    a("v_bfe_u32 v2, v1, 2, 1\nv_mul_u32_u24 v2, 0x8000, v2\nv_lshl_or_b32 v2, v2, 16, v2")
    for r in range(8):
        a(f"v_lshl_or_b32 v{WP+r}, v{36+2*r+1}, 16, v{36+2*r}\nv_xor_b32 v{WP+r}, v2, v{WP+r}")
    PB = 160
    OB = 224
    CV = 36
    TM = 52
    def phi(src):
        for i in range(2):
            for h in range(2):
                u = 2 * i + h
                for q in range(4):
                    a(f"v_cvt_pk_bf16_f32 v{CV+4*u+q}, v{src+16*i+8*h+2*q}, v{src+16*i+8*h+2*q+1}")
        for u in range(4):
            a(f"{MF} {v(PB+16*u,16)}, {v(WP+4*(u&1),4)}, {v(CV+4*u,4)}, 0")
    phi(Kk)
    a("v_and_b32 v2, 16, v1\nv_cmp_eq_u32 s[10:11], 0, v2\nv_mov_b32 v8, 0x3f803f80")
    for i in range(2):
        for q in range(8):
            a(f"v_cvt_pk_bf16_f32 v{V+16*i+q}, v{V+16*i+2*q}, v{V+16*i+2*q+1}")
    for i in range(2):
        for q in range(8):
            a(f"v_cndmask_b32 v{Kk+16*i+q}, v8, v{V+16*i+q}, s[10:11]")
            a(f"v_cndmask_b32 v{Kk+16*i+8+q}, v{V+16*i+q}, v8, s[10:11]")
    a(f"""
    s_lshl_b32 s52, s20, 13
    v_lshrrev_b32 v3, 5, v1
    v_lshlrev_b32 v3, 1, v3
    v_bfe_u32 v4, v1, 1, 2
    v_xor_b32 v4, v3, v4
    v_lshlrev_b32 v4, 4, v4
    v_lshl_add_u32 v4, v9, 6, v4
    v_add_u32 v60, s52, v4
    v_xor_b32 v61, 16, v60
    v_bfe_u32 v4, v1, 2, 2
    v_lshl_add_u32 v5, v3, 1, v4
    v_lshrrev_b32 v6, 1, v5
    v_bfe_u32 v7, v1, 4, 1
    v_lshlrev_b32 v7, 1, v7
    v_bfe_u32 v2, v1, 1, 1
    v_add_u32 v7, v7, v2
    v_xor_b32 v6, v6, v7
    v_lshlrev_b32 v6, 4, v6
    v_lshl_add_u32 v6, v5, 6, v6
    v_and_b32 v2, 1, v1
    v_lshl_add_u32 v6, v2, 3, v6
    v_add_u32 v62, s52, v6
    """)
    for pr in range(2):
        softmax_units(a, [(PB + 16 * u, OB + 8 * u) for u in (2 * pr, 2 * pr + 1)], TM)
        for u in (2 * pr, 2 * pr + 1):
            a.dsop(f"ds_write_b128 v60, {v(OB+8*u,4)} offset:{2048*u}", "pw")
            a.dsop(f"ds_write_b128 v61, {v(OB+8*u+4,4)} offset:{2048*u}", "pw")
    a.wait(lg="all")
    PF = V
    for u in range(4):
        for i2 in range(2):
            for ab in range(2):
                a.dsop(f"ds_read_b64_tr_b16 {v(PF+8*u+4*i2+2*ab,2)}, v62 offset:{2048*u + (16*i2+8*ab)*64}", ("pf", u))
    KVD = PB
    for u in range(4):
        i, h = u >> 1, u & 1
        a.wait(lg=("pf", u))
        for i2 in range(2):
            first = (i == 0 and i2 == 0)
            a(f"{MF} {v(KVD+16*h,16)}, {v(Kk+16*i+8*h+4*i2,4)}, {v(PF+8*u+4*i2,4)}, {'0' if first else v(KVD+16*h,16)}")
    XS = 32768
    a(f"""
    s_mul_i32 s52, s20, 2304
    s_add_u32 s52, s52, {XS}
    s_xor_b32 s53, s20, 2
    s_mul_i32 s53, s53, 2304
    s_add_u32 s53, s53, {XS}
    v_add_u32 v2, s52, v26
    v_add_u32 v5, s52, v27
    v_add_u32 v6, s53, v26
    v_add_u32 v63, s53, v27
    """)
    KP = PB + 32
    RC = PB + 44
    L1 = a.new_label("Lx"); L2 = a.new_label("Lx")
    a(f"s_cmp_eq_u32 s62, 0\ns_cbranch_scc1 {L1}")
    a("s_nop 7")
    def xch(give, gz, keep, kz):
        a(f"ds_write_b128 v2, {v(give,4)}\nds_write_b128 v2, {v(give+4,4)} offset:1024\nds_write_b32 v5, v{gz} offset:2048")
        for q in range(8): a(f"v_mov_b32 v{KP+q}, v{keep+q}")
        a(f"v_mov_b32 v{KP+8}, v{kz}")
    xch(KVD, KVD + 8, KVD + 24, KVD + 16)
    a(f"s_branch {L2}")
    a.label(L1)
    a("s_nop 7")
    xch(KVD + 24, KVD + 16, KVD, KVD + 8)
    a.label(L2)
    a.wait(lg="all"); a("s_barrier")
    a.dsop(f"ds_read_b128 {v(RC,4)}, v6", "x"); a.dsop(f"ds_read_b128 {v(RC+4,4)}, v6 offset:1024", "x")
    a.dsop(f"ds_read_b32 v{RC+8}, v63 offset:2048", "x")
    a.wait(lg="all")
    for q in range(9):
        a(f"v_add_f32 v{KP+q}, v{KP+q}, v{RC+q}")
    for q in range(9):
        a(f"v_min_u32 v{KP+q}, 0xfffffffe, v{KP+q}")
    a.vmop(f"buffer_store_dwordx4 {v(KP,4)}, v26, s[64:67], s54 offen sc1", "pub")
    a.vmop(f"buffer_store_dwordx4 {v(KP+4,4)}, v26, s[64:67], s54 offen offset:1024 sc1", "pub")
    a.vmop(f"buffer_store_dword v{KP+8}, v27, s[64:67], s54 offen offset:2048 sc1", "pub")
    a.stamp(3)
    a("s_nop 1")
    phi(Q)
    KI = 45056
    a(f"""
    s_sub_u32 s52, s49, s48
    s_lshl_b32 s53, s63, 1
    s_add_u32 s52, s52, s53
    s_lshl_b32 s52, s52, 11
    s_add_u32 s52, s52, {KI}
    v_lshrrev_b32 v2, 5, v1
    v_bfe_u32 v5, v1, 1, 2
    v_xor_b32 v5, v2, v5
    v_lshlrev_b32 v5, 4, v5
    v_lshl_add_u32 v5, v9, 6, v5
    v_add_u32 v60, s52, v5
    v_xor_b32 v61, 32, v60
    s_lshl_b32 s53, s63, 12
    s_add_u32 s53, s53, {KI}
    v_lshl_add_u32 v5, v2, 4, v4
    v_lshlrev_b32 v5, 6, v5
    v_lshrrev_b32 v6, 1, v4
    v_xor_b32 v6, v6, v7
    v_lshl_add_u32 v5, v6, 4, v5
    v_and_b32 v6, 1, v1
    v_lshl_add_u32 v5, v6, 3, v5
    v_add_u32 v62, s53, v5
    v_xor_b32 v63, 32, v62
    """)
    for pr in range(2):
        softmax_units(a, [(PB + 16 * u, OB + 8 * u) for u in (2 * pr, 2 * pr + 1)], TM)
    a("s_lshl_b32 s53, s51, 4\ns_add_u32 s53, s53, 128")
    check_cleared(a, 53, "B")
    a.stamp(4)
    GX, GZ = 64, 192
    LP = a.new_label("Lpoll"); LD = a.new_label("Lpolld");
    a("s_mov_b32 s59, 0x40000")
    a.label(LP)
    for r in range(16):
        a(f"s_mov_b32 s52, {r*KV_RB}")
        a.vmop(f"buffer_load_dwordx4 {v(GX+8*r,4)}, v26, s[64:67], s52 offen sc1", ("g", r))
        a.vmop(f"buffer_load_dwordx4 {v(GX+8*r+4,4)}, v26, s[64:67], s52 offen offset:1024 sc1", ("g", r))
        a.vmop(f"buffer_load_dword v{GZ+r}, v27, s[64:67], s52 offen offset:2048 sc1", ("g", r))
    SM = 36
    for r in range(16):
        a.wait(vm=("g", r))
        b = GX + 8 * r
        if r == 0:
            a(f"v_max3_u32 v2, v{b}, v{b+1}, v{b+2}\nv_max3_u32 v5, v{b+3}, v{b+4}, v{b+5}\nv_max3_u32 v2, v2, v{b+6}, v{b+7}\nv_max_u32 v5, v5, v{GZ}")
        else:
            a(f"v_max3_u32 v2, v2, v{b}, v{b+1}\nv_max3_u32 v5, v5, v{b+2}, v{b+3}\nv_max3_u32 v2, v2, v{b+4}, v{b+5}\nv_max3_u32 v5, v5, v{b+6}, v{b+7}\nv_max_u32 v2, v2, v{GZ+r}")
        if r == 1:
            for q in range(4): a(f"v_pk_add_f32 {v(SM+2*q,2)}, {v(GX+2*q,2)}, {v(b+2*q,2)}")
            a(f"v_add_f32 v{SM+8}, v{GZ}, v{GZ+1}")
        elif r > 1:
            for q in range(4): a(f"v_pk_add_f32 {v(SM+2*q,2)}, {v(SM+2*q,2)}, {v(b+2*q,2)}")
            a(f"v_add_f32 v{SM+8}, v{SM+8}, v{GZ+r}")
    a("v_max_u32 v2, v2, v5\nv_cmp_eq_u32 vcc, -1, v2")
    a(f"s_cbranch_vccz {LD}\ns_sub_u32 s59, s59, 1\ns_cmp_eq_u32 s59, 0\ns_cbranch_scc1 {LD}\ns_sleep 4\ns_branch {LP}")
    a.label(LD)
    a.stamp(5)
    for q in range(4): a(f"v_cvt_pk_bf16_f32 v{48+q}, v{SM+2*q}, v{SM+2*q+1}")
    for q in range(4): a(f"v_cvt_pk_bf16_f32 v{52+q}, v{SM+8}, v{SM+8}")
    a.dsop("ds_write_b128 v60, v[48:51]", "kw"); a.dsop("ds_write_b128 v61, v[52:55]", "kw")
    a.wait(lg="all"); a("s_barrier")
    KA = 64
    for h in range(2):
        for i2 in range(2):
            a.dsop(f"ds_read_b64_tr_b16 {v(KA+8*h+4*i2,2)}, v62 offset:{2048*h + 512*i2}", "ka")
            a.dsop(f"ds_read_b64_tr_b16 {v(KA+8*h+4*i2+2,2)}, v63 offset:{2048*h + 512*i2 + 256}", "ka")
    a(f"""
    s_lshl_b32 s52, s50, 2
    s_lshl_b32 s53, s62, 1
    s_add_u32 s52, s52, s53
    s_lshl_b32 s52, s52, 5
    s_add_u32 s52, s52, s48
    s_lshl_b32 s52, s52, 10
    s_add_u32 s52, s52, {O_OFF}
    s_add_u32 s53, s52, 32768
    """)
    a.wait(lg="all")
    OD = 96
    for u in range(4):
        h = u & 1
        for i2 in range(2):
            a(f"{MF} {v(OD+16*u,16)}, {v(KA+8*h+4*i2,4)}, {v(OB+8*u+4*i2,4)}, {'0' if i2 == 0 else v(OD+16*u,16)}")
    for u in range(4):
        d = OD + 16 * u
        a(f"v_add_f32 v{d+8}, 0x358637bd, v{d+8}\nv_rcp_f32 v{d+8}, v{d+8}")
        for q in range(4): a(f"v_pk_mul_f32 {v(d+2*q,2)}, {v(d+2*q,2)}, {v(d+8,2)} op_sel:[0,0] op_sel_hi:[1,0]")
        for q in range(4): a(f"v_cvt_pk_bf16_f32 v{d+12+q}, v{d+2*q}, v{d+2*q+1}")
        a.vmop(f"buffer_store_dwordx4 {v(d+12,4)}, v26, s[36:39], s{52 + (u>>1)} offen offset:{1024*(u&1)}", "o")
    a.stamp(6)
    a.stamp_out(7, 0)

def role_A2(a):
    a.reset()
    a("""
    s_load_dwordx2 s[4:5], s[0:1], 0
    s_load_dwordx4 s[8:11], s[0:1], 40
    s_load_dwordx2 s[12:13], s[0:1], 64
    s_load_dwordx2 s[14:15], s[0:1], 104
    s_load_dwordx2 s[46:47], s[0:1], 120
    """)
    tilemap(a, 'A')
    P = 1040
    a(f"""
    v_lshlrev_b32 v26, 4, v1
    s_lshl_b32 s52, s51, 6
    s_lshr_b32 s53, s20, 1
    s_add_u32 s52, s52, s53
    s_and_b32 s53, s20, 1
    s_lshl_b32 s53, s53, 5
    s_add_u32 s52, s52, s53
    s_lshl_b32 s60, s52, 10
    s_mul_i32 s61, s20, {16*P}
    s_lshl_b32 s52, s50, 2
    s_add_u32 s52, s52, s20
    s_lshl_b32 s62, s52, 16
    s_add_u32 s62, s62, {H_OFF}
    v_and_b32 v9, 31, v1
    v_lshrrev_b32 v3, 5, v1
    s_waitcnt lgkmcnt(0)
    """)
    a.srd(24, 4, 2097152); a.srd(28, 8, 524288); a.srd(32, 10, 524288)
    a.srd(36, 46, 268435456); a.srd(40, 14, 8388608)
    def cload(part):
        for i in range(16):
            a(f"s_add_u32 m0, s61, {part*64*P + i*P}\ns_add_u32 s56, s60, {i*2048}")
            a.vmop(f"buffer_load_dwordx4 v26, s[{28+4*part}:{31+4*part}], s56 offen lds", ("c", part))
    def hload(ks):
        if ks % 4 == 0: a(f"s_add_u32 s57, s62, {ks*1024}")
        a.vmop(f"buffer_load_dwordx4 {ar(4*ks,4)}, v26, s[36:39], s57 offen offset:{(ks%4)*1024}", ("h", ks))
    cload(0)
    for ks in range(32): hload(ks)
    a(f"""
    s_lshl_b32 s52, s52, 5
    v_lshl_add_u32 v2, v3, 2, s52
    s_lshl_b32 s53, s51, 7
    v_lshl_add_u32 v4, v9, 2, s53
    v_lshl_add_u32 v5, v2, 10, v4
    v_lshlrev_b32 v6, 1, v4
    v_lshl_add_u32 v6, v2, 12, v6
    v_mul_u32_u24 v7, {P}, v9
    v_lshl_add_u32 v7, v3, 4, v7
    v_add_u32 v8, {64*P}, v7
    """)
    a.wait(vm=("c", 0)); a("s_barrier")
    a.stamp(1)
    ACC = 64; FR = 96; XR = 128; DS = 27
    D = 3
    def reads(ks):
        f = FR + 8 * (ks % (D + 1)); ad = 7 + (ks >> 5); o = (ks & 31) * 32
        a.dsop(f"ds_read_b128 {v(f,4)}, v{ad} offset:{o}", ("rd", ks))
        a.dsop(f"ds_read_b128 {v(f+4,4)}, v{ad} offset:{o + 32*P}", ("rd", ks))
    for ks in range(D): reads(ks)
    extra = []
    for i in range(16):
        extra.append(("c", i))
    for ks in range(32, 64): extra.append(("h", ks))
    extra.append(("d", 0))
    for r in range(16): extra.append(("x", r))
    def issue(e):
        if e[0] == "c":
            i = e[1]
            a(f"s_add_u32 m0, s61, {64*P + i*P}\ns_add_u32 s56, s60, {i*2048}")
            a.vmop(f"buffer_load_dwordx4 v26, s[32:35], s56 offen lds", ("c", 1))
        elif e[0] == "h": hload(e[1])
        elif e[0] == "d": a.vmop(f"global_load_dword v{DS}, v4, s[12:13]", "x")
        else:
            r = e[1]
            if r % 4 == 0: a(f"s_mov_b32 s58, {(r>>2)*8192}")
            a.vmop(f"buffer_load_dword v{XR+r}, v5, s[24:27], s58 offen offset:{(r&3)*1024}", "x")
    while extra and extra[0][0] == "c": issue(extra.pop(0))
    for ks in range(64):
        m = ks + D
        if m == 32:
            a.wait(vm=("c", 1)); a("s_barrier")
        if m < 64: reads(m)
        a.wait(vm=("h", ks), lg=("rd", ks))
        f = FR + 8 * (ks % (D + 1))
        for n in range(2):
            a(f"{MF} {v(ACC+16*n,16)}, {ar(4*ks,4)}, {v(f+4*n,4)}, {'0' if ks == 0 else v(ACC+16*n,16)}")
            if extra: issue(extra.pop(0))
    a.stamp(2)
    a.wait(vm="x")
    a(f"v_lshlrev_b32 v28, 16, v{DS}\nv_and_b32 v29, 0xffff0000, v{DS}")
    OUT = 160
    for r in range(16):
        o = OUT + 2 * r
        a(f"v_lshlrev_b32 v{o}, 16, v{XR+r}\nv_and_b32 v{o+1}, 0xffff0000, v{XR+r}")
        a(f"v_pk_mul_f32 {v(o,2)}, {v(o,2)}, v[28:29]")
        a(f"v_cvt_pk_bf16_f32 v{o+1}, v{o}, v{o+1}")
        a(f"v_lshlrev_b32 v{o}, 16, v{o+1}\nv_and_b32 v{o+1}, 0xffff0000, v{o+1}")
    for r in range(16):
        o = OUT + 2 * r
        a(f"v_add_f32 v{o}, v{o}, v{ACC+r}\nv_add_f32 v{o+1}, v{o+1}, v{ACC+16+r}")
        a(f"s_mov_b32 s58, {(8*(r>>2) + (r&3))*4096}")
        a.vmop(f"buffer_store_dwordx2 {v(o,2)}, v6, s[40:43], s58 offen", "out")
    a.stamp(3)
    a.stamp_out(4, 64)

def role_B2(a):
    a.reset()
    a("""
    s_load_dwordx2 s[8:9], s[0:1], 96
    s_load_dwordx2 s[14:15], s[0:1], 104
    s_load_dwordx2 s[46:47], s[0:1], 120
    """)
    tilemap(a, 'A')
    a(f"""
    v_lshlrev_b32 v26, 4, v1
    v_lshrrev_b32 v2, 3, v1
    v_and_b32 v3, 7, v1
    v_bfe_u32 v4, v1, 4, 1
    v_lshlrev_b32 v4, 2, v4
    v_xor_b32 v3, v3, v4
    v_lshlrev_b32 v3, 4, v3
    v_lshl_add_u32 v10, v2, 10, v3
    s_lshl_b32 s60, s51, 7
    s_lshl_b32 s52, s20, 13
    s_add_u32 s60, s60, s52
    s_lshl_b32 s61, s20, 10
    s_lshl_b32 s52, s50, 2
    s_add_u32 s52, s52, s20
    s_lshl_b32 s62, s52, 15
    s_add_u32 s62, s62, {O_OFF}
    v_and_b32 v9, 31, v1
    v_lshrrev_b32 v3, 5, v1
    s_waitcnt lgkmcnt(0)
    """)
    a.srd(28, 8, 524288); a.srd(36, 46, 268435456); a.srd(40, 14, 8388608)
    def wload(i):
        a(f"s_add_u32 m0, s61, {i*4096}\ns_add_u32 s56, s60, {i*32768}")
        a.vmop(f"buffer_load_dwordx4 v10, s[28:31], s56 offen lds", ("w", i >> 3))
    def oload(ks):
        if ks % 4 == 0: a(f"s_add_u32 s57, s62, {ks*1024}")
        a.vmop(f"buffer_load_dwordx4 {ar(4*ks,4)}, v26, s[36:39], s57 offen offset:{(ks%4)*1024}", ("h", ks))
    for i in range(8): wload(i)
    for ks in range(16): oload(ks)
    for i in range(8, 16): wload(i)
    for ks in range(16, 32): oload(ks)
    a(f"""
    v_bfe_u32 v4, v1, 2, 2
    v_lshl_add_u32 v5, v3, 3, v4
    v_lshlrev_b32 v5, 7, v5
    v_lshrrev_b32 v4, 1, v4
    v_lshl_add_u32 v5, v4, 6, v5
    v_bfe_u32 v4, v1, 4, 1
    v_lshl_add_u32 v5, v4, 5, v5
    v_and_b32 v4, 3, v1
    v_lshl_add_u32 v7, v4, 3, v5
    v_xor_b32 v8, 64, v7
    s_lshl_b32 s52, s52, 5
    v_lshl_add_u32 v2, v3, 2, s52
    s_lshl_b32 s53, s51, 8
    s_add_u32 s53, s53, 2048
    v_lshl_add_u32 v4, v9, 2, s53
    v_lshl_add_u32 v6, v2, 12, v4
    """)
    a.wait(vm=("w", 0)); a("s_barrier")
    a.stamp(1)
    ACC = 64; FR = 96; D = 2
    def reads(ks):
        f = FR + 8 * (ks % (D + 1))
        for n in range(2):
            for ab in range(2):
                a.dsop(f"ds_read_b64_tr_b16 {v(f+4*n+2*ab,2)}, v{7+n} offset:{ks*2048 + ab*512}", ("rd", ks))
    for ks in range(D): reads(ks)
    for ks in range(32):
        m = ks + D
        if m == 16:
            a.wait(vm=("w", 1)); a("s_barrier")
        if m < 32: reads(m)
        a.wait(vm=("h", ks), lg=("rd", ks))
        f = FR + 8 * (ks % (D + 1))
        for n in range(2):
            a(f"{MF} {v(ACC+16*n,16)}, {ar(4*ks,4)}, {v(f+4*n,4)}, {'0' if ks == 0 else v(ACC+16*n,16)}")
    a.stamp(2)
    OUT = 128
    for r in range(16):
        o = OUT + 2 * r
        a(f"v_cvt_pk_bf16_f32 v{o+1}, v{ACC+r}, v{ACC+16+r}")
        a(f"v_lshlrev_b32 v{o}, 16, v{o+1}\nv_and_b32 v{o+1}, 0xffff0000, v{o+1}")
        a(f"s_mov_b32 s58, {(8*(r>>2) + (r&3))*4096}")
        a.vmop(f"buffer_store_dword v{o}, v6, s[40:43], s58 offen", "out")
        a.vmop(f"buffer_store_dword v{o+1}, v6, s[40:43], s58 offen offset:128", "out")
    a.stamp(3)
    a.stamp_out(4, 64)

def kernel(a, name, ra, rb):
    a.raw(kstart(name))
    if opt['stamp']: a("s_memrealtime s[70:71]")
    a(f"""
    s_cmp_ge_u32 s2, 256
    s_cbranch_scc1 {name}_end
    v_lshrrev_b32 v2, 6, v0
    v_and_b32 v1, 63, v0
    s_bitcmp1_b32 s2, 0
    v_readfirstlane_b32 s20, v2
    s_cbranch_scc1 {name}_B
    """)
    ra(a)
    a("s_endpgm")
    a.label(f"{name}_B")
    rb(a)
    a.label(f"{name}_end")
    a("s_endpgm")

a = G()
a.raw("; @launch kernel=p1_kernel grid=(256,1,1) block=(256,1,1) lds=163840")
a.raw("; @launch kernel=p2_kernel grid=(256,1,1) block=(256,1,1) lds=133120")
a.raw(HEAD)
kernel(a, "p1_kernel", role_A1, role_B1)
a.raw(kd("p1_kernel", 256, 256))
kernel(a, "p2_kernel", role_A2, role_B2)
a.raw(kd("p2_kernel", 512, 256))
lines = []
for l in a.lines: lines += l.split("\n")
lines = hazard.fix(lines, verbose=True)
open(sys.argv[1], "w").write("\n".join(lines) + "\n")
```

```python
import sys
from asmlib import *
import hazard

opt = dict(stamp=0, D=2, bmap=2, clk=0, pre=2, spin=0x40000, fast=1, pace=77, cst=0, noc=0, nomfma=0, noread=0, hld=1, rot2=0, rpace=64, touch=0, npre=12)
for x in sys.argv[2:]:
    k, v_ = x.split("="); opt[k] = int(v_)

H_OFF = 0
O_OFF = 4 << 20
E_OFF = 6 << 20
KV_OFF = (6 << 20) + (128 << 10)
KV_RB = 2304
KV_FLAG = 16 * KV_RB
KV_HEAD = KV_FLAG + 128
FL_OFF = 8 << 20
TAG_OFF = (8 << 20) + 65536
XF_OFF = (8 << 20) + 32768
STAMP_OFF = 64 << 20
LOG2E = 0x3fb8aa3b
INV2PI = 0x3e22f983
MF = "v_mfma_f32_32x32x16_bf16"

def v(i, n=1):
    return f"v{i}" if n == 1 else f"v[{i}:{i+n-1}]"
def ar(i, n=1):
    return f"a{i}" if n == 1 else f"a[{i}:{i+n-1}]"

class G(Asm):
    def __init__(self):
        super().__init__()
        self.vm = []; self.lg = []
    def reset(self):
        self.vm = []; self.lg = []
    def vmop(self, s, tag):
        if len(self.vm) >= 61:
            self("s_waitcnt vmcnt(60)"); del self.vm[:len(self.vm) - 60]
        self(s); self.vm.append(tag)
    def dsop(self, s, tag):
        self(s); self.lg.append(tag)
    def _cnt(self, lst, tag, mx):
        if tag not in lst: return None
        idx = max(i for i, t in enumerate(lst) if t == tag)
        n = min(len(lst) - 1 - idx, mx)
        del lst[:len(lst) - n]
        return n
    def wait(self, vm=None, lg=None):
        parts = []
        if vm is not None:
            if vm == "all": self.vm.clear(); parts.append("vmcnt(0)")
            else:
                n = self._cnt(self.vm, vm, 63)
                if n is not None: parts.append(f"vmcnt({n})")
        if lg is not None:
            if lg == "all": self.lg.clear(); parts.append("lgkmcnt(0)")
            else:
                n = self._cnt(self.lg, lg, 15)
                if n is not None: parts.append(f"lgkmcnt({n})")
        if parts: self("s_waitcnt " + " ".join(parts))
    def srd(self, b, lo, nbytes):
        self(f"s_mov_b32 s{b}, s{lo}\ns_mov_b32 s{b+1}, s{lo+1}\ns_mov_b32 s{b+2}, {nbytes}\ns_mov_b32 s{b+3}, 0x20000")
    def srd_off(self, b, lo, off, nbytes):
        self(f"s_add_u32 s{b}, s{lo}, {off}\ns_addc_u32 s{b+1}, s{lo+1}, 0\ns_mov_b32 s{b+2}, {nbytes}\ns_mov_b32 s{b+3}, 0x20000")
    def stamp(self, i):
        if opt['stamp']:
            self(f"{'s_memtime' if opt['clk'] else 's_memrealtime'} s[100:101]\ns_waitcnt lgkmcnt(0)\ns_mov_b32 s{70+i}, s100"); self.lg.clear()
    def stamp_out(self, n):
        if opt['stamp']:
            L = self.new_label("Lso")
            self(f"s_cmp_lg_u32 s20, 0\ns_cbranch_scc1 {L}")
            self(f"s_lshl_b32 s52, s2, 7\ns_add_u32 s52, s52, {STAMP_OFF}\nv_mov_b32 v2, s52")
            for i in range(n):
                self(f"v_mov_b32 v3, s{70+i}\nbuffer_store_dword v3, v2, s[36:39], 0 offen offset:{4*i}")
            if opt['cst']:
                for c in range(1, 8):
                    self(f"v_mov_b32 v3, s{2+2*c}\nbuffer_store_dword v3, v2, s[36:39], 0 offen offset:{64+4*c}")
            self.label(L)
    def emit(self, it):
        if isinstance(it, str): self(it)
        elif it[0] == 'ds': self.dsop(it[1], it[2])
        elif it[0] == 'vm': self.vmop(it[1], it[2])
        elif it[0] == 'wait': self.wait(vm=it[1], lg=it[2])
def cost(it):
    if isinstance(it, str):
        c = 0
        for l in it.split("\n"):
            l = l.strip()
            if l.startswith(hazard.TRANS): c += 8
            elif l.startswith("v_mfma"): c += 8
            elif l.startswith("s_nop"): c += 4 * (int(l.split()[1]) + 1)
            elif l.startswith("s_"): c += 3
            elif l.startswith(("v_mul_f32", "v_add_f32", "v_max_f32", "v_mov", "v_xor", "v_and", "v_lshl", "v_sub")): c += 4
            else: c += 4.6
        return c
    if it[0] == 'vm': return 8 + 3 * it[1].count("\n")
    if it[0] == 'skip': return it[1]
    return 4
class Filler:
    def __init__(self, items, dma=()):
        self.items = list(items); self.credit = 0; self.dma = list(dma); self.dcredit = 0
    def run(self, a, budget, elapsed=32):
        self.credit += budget; self.dcredit += elapsed
        while self.dma and isinstance(self.dma[0], str):
            it = self.dma.pop(0); self.credit -= cost(it); a.emit(it)
        if self.dma:
            pace = opt['rpace'] if self.dma[0][2][0] == "ch" else opt['pace']
            if self.dcredit >= pace:
                it = self.dma.pop(0); self.dcredit -= pace; self.credit -= cost(it); a.emit(it)
        if not self.dma: self.dcredit = 0
        while self.items and self.credit >= cost(self.items[0]) * 0.5:
            it = self.items.pop(0); self.credit -= cost(it); a.emit(it)
            if isinstance(it, str) and it.startswith("v_mfma"): self.credit += budget + 8; self.dcredit += elapsed
        if not self.items: self.credit = 0
    def flush(self, a, dma=True):
        for it in self.items: a.emit(it)
        self.items = []
        if dma:
            for it in self.dma: a.emit(it)
            self.dma = []

def tilemap(a, kind, rb, col, rot):
    a("s_lshr_b32 s21, s2, 1\ns_and_b32 s21, s21, 3\ns_lshr_b32 s22, s2, 3")
    if kind == 2:
        a(f"""
        s_lshl_b32 s{rb}, s21, 2
        s_and_b32 s52, s22, 3
        s_add_u32 s{rb}, s{rb}, s52
        s_lshr_b32 s{col}, s22, 2
        s_lshl_b32 s{rot}, s52, 1
        s_add_u32 s{rot}, s{rot}, s{col}
        s_and_b32 s{rot}, s{rot}, 7
        """)
    else:
        a(f"""
        s_and_b32 s{rb}, s21, 1
        s_lshl_b32 s{rb}, s{rb}, 3
        s_and_b32 s52, s22, 7
        s_add_u32 s{rb}, s{rb}, s52
        s_lshr_b32 s{col}, s21, 1
        s_lshl_b32 s{col}, s{col}, 2
        s_lshr_b32 s53, s22, 3
        s_add_u32 s{col}, s{col}, s53
        s_lshl_b32 s{rot}, s53, 1
        s_add_u32 s{rot}, s{rot}, s52
        s_and_b32 s{rot}, s{rot}, 7
        """)

def dma_items(c, ldsbase, pieces, tag, wreg=58):
    kinds = {p[2] for p in pieces}
    pre = f"s_add_u32 s56, s55, {c}\ns_and_b32 s56, s56, 7"
    if 'x' in kinds: pre += "\ns_lshl_b32 s57, s56, 7"
    if 'w' in kinds: pre += f"\ns_mul_i32 s{wreg}, s56, {64*3072}"
    out = [pre]
    for (vr, sr, kind, ls, li) in pieces:
        out.append(('vm', f"s_add_u32 m0, s{ls}, {ldsbase + li}\n"
                    f"buffer_load_dwordx4 v{vr}, s[{sr}:{sr+3}], s{57 if kind == 'x' else wreg} offen lds", tag))
    return out

def ring_loop(a, S, stage, pieces, addr_regs, reads, mfmas, early, mid, extra_at, slot_budget, elapsed, endbar=False):
    D = opt['D']
    pre = min(opt['pre'], S)
    for c in range(pre):
        for it in dma_items(c, (c % S) * stage, pieces, ("ch", c)): a.emit(it)
    mid()
    fill = Filler([])
    for c in range(pre, S):
        fill.dma += dma_items(c, (c % S) * stage, pieces, ("ch", c))
    if opt['pre'] >= 9: fill.flush(a)
    a.wait(vm=("ch", 0), lg="all"); a("s_barrier")
    a.stamp(1)
    issued = S
    def need(c):
        while any((not isinstance(it, str)) and it[2] == ("ch", c) for it in fill.dma):
            a.emit(fill.dma.pop(0))
    for n in range(D): reads(n)
    for n in range(32):
        m = n + D
        if m < 32:
            if m % 4 == 0:
                c = m // 4
                need(c)
                e = early(c)
                a.wait(vm=("ch", c), lg=("all" if e else None)); a("s_barrier")
                if opt['cst']: a(f"s_memtime s[{2+2*c}:{3+2*c}]")
                delta = stage if (c % S) != 0 else -(S - 1) * stage
                for r in addr_regs:
                    a(f"v_add_u32 v{r}, {delta}, v{r}" if delta > 0 else f"v_subrev_u32 v{r}, {-delta}, v{r}")
                free_upto = c - (1 if e else 2)
                while issued < 8 and issued - S <= free_upto:
                    fill.dma += dma_items(issued, (issued % S) * stage, pieces, ("ch", issued)); issued += 1
                fill.dma += extra_at.get(c, [])
            if not opt['noread']: reads(m)
        a.wait(lg=("rd", n))
        if endbar and n == 31: a("s_barrier")
        for q in mfmas(n):
            if not opt['nomfma'] or n == 0: a(q)
            fill.run(a, slot_budget, elapsed)
    return fill

def cmul(d, x, y):
    return (f"v_mul_f32 v{d}, v{x}, v{y}\nv_mul_f32 v{d+1}, v{x}, v{y+1}\n"
            f"v_fma_f32 v{d}, -v{x+1}, v{y+1}, v{d}\nv_fma_f32 v{d+1}, v{x+1}, v{y}, v{d+1}")
def cfma(d, x, y, z):
    return (f"v_pk_fma_f32 {v(d,2)}, {v(x,2)}, {v(y,2)}, {v(z,2)} op_sel:[0,0,0] op_sel_hi:[0,1,1]\n"
            f"v_pk_fma_f32 {v(d,2)}, {v(x,2)}, {v(y,2)}, {v(d,2)} op_sel:[1,1,0] op_sel_hi:[1,0,1] neg_lo:[1,0,0]")
def pkb(d, s, sel, x, z, neg=False):
    n = " neg_lo:[1,0,0] neg_hi:[1,0,0]" if neg else ""
    return f"v_pk_fma_f32 {v(d,2)}, {v(s,2)}, {v(x,2)}, {v(z,2)} op_sel:[{sel},0,0] op_sel_hi:[{sel},1,1]{n}"

def poll_flags(a, voff, srd, soff, tmp):
    L = a.new_label("Lpf"); LD = a.new_label("Lpfd")
    a(f"s_mov_b32 s59, {opt['spin']}")
    a.label(L)
    a(f"buffer_load_dword v{tmp}, v{voff}, s[{srd}:{srd+3}], {soff} offen sc1\ns_waitcnt vmcnt(0)")
    a.vm.clear()
    a(f"v_cmp_ne_u32 vcc, s3, v{tmp}")
    a(f"s_cbranch_vccz {LD}\ns_sub_u32 s59, s59, 1\ns_cmp_eq_u32 s59, 0\ns_cbranch_scc1 {LD}\ns_sleep 1\ns_branch {L}")
    a.label(LD)
def flag_store(vtag, voff, srd, soff):
    return f"s_mov_b64 exec, 1\nbuffer_store_dword v{vtag}, v{voff}, s[{srd}:{srd+3}], {soff} offen sc1\ns_mov_b64 exec, -1"

def xcc_publish(a, role, vtmp):
    L = a.new_label("Lxp")
    a(f"""
    s_getreg_b32 s23, hwreg(HW_REG_XCC_ID)
    s_and_b32 s23, s23, 7
    s_lshl_b32 s52, s3, 3
    s_or_b32 s23, s23, s52
    s_lshl_b32 s87, s50, 7
    s_add_u32 s87, s87, {XF_OFF + 2048*role}
    s_cmp_lg_u32 s20, 0
    s_cbranch_scc1 {L}
    s_lshl_b32 s52, s51, 2
    v_mov_b32 v{vtmp}, s52
    v_mov_b32 v{vtmp+1}, s23
    """)
    a(flag_store(vtmp + 1, vtmp, 36, "s87"))
    a.label(L)
def xcc_load(vdst, vfl, vtmp):
    return ('vm', f"v_and_b32 v{vtmp}, 28, v{vfl}\nbuffer_load_dword v{vdst}, v{vtmp}, s[36:39], s87 offen sc1", "xf")
def dual_store(a, vxf, stores, tag, between, flag):
    LS = a.new_label("Lslow"); LE = a.new_label("Lsend")
    vm0, lg0 = list(a.vm), list(a.lg)
    variants = [" sc1"]
    if opt['fast']:
        a(f"v_cmp_ne_u32 vcc, s23, v{vxf}\ns_cbranch_vccnz {LS}")
        variants = ["", " sc1"]
    for k_, sfx in enumerate(variants):
        a.vm[:] = vm0; a.lg[:] = lg0
        stores(sfx)
        between()
        a.wait(vm=tag)
        a.vmop(flag.replace(" sc1", sfx), "fl")
        if len(variants) == 2 and k_ == 0:
            a(f"s_branch {LE}"); a.label(LS); a("s_nop 7\ns_nop 3")
    a.label(LE)

def tag_finish(a, role, cond):
    L = a.new_label("Ltag")
    a(cond(L))
    a(f"v_mov_b32 v2, {TAG_OFF + 128*role}\nv_mov_b32 v3, s3")
    a(flag_store(3, 2, 36, 0))
    a.label(L)

def role_A(a):
    a.reset()
    S, stage = 5, 32768
    a("""
    s_load_dwordx2 s[4:5], s[0:1], 0
    s_load_dwordx4 s[8:11], s[0:1], 24
    s_load_dwordx2 s[46:47], s[0:1], 120
    s_load_dwordx4 s[12:15], s[0:1], 8
    s_load_dwordx4 s[16:19], s[0:1], 56
    s_load_dwordx4 s[84:87], s[0:1], 40
    s_load_dwordx2 s[88:89], s[0:1], 104
    """)
    tilemap(a, 2, 50, 51, 55)
    XA, BA = 16, 20
    ACC = 64; FR = 128
    LAM, C2, L16, L32, MU, MU8, WA, WB = 24, 26, 28, 30, 32, 34, 36, 38
    T = 44
    EX = 176
    AD = 184
    a("""
    v_lshrrev_b32 v2, 5, v1
    v_lshlrev_b32 v2, 5, v2
    v_bfe_u32 v3, v1, 3, 1
    v_lshl_add_u32 v2, v3, 4, v2
    v_bfe_u32 v3, v1, 4, 1
    v_add_u32 v2, v2, v3
    v_lshlrev_b32 v2, 10, v2
    v_and_b32 v3, 7, v1
    v_lshrrev_b32 v4, 4, v1
    v_xor_b32 v3, v3, v4
    v_lshlrev_b32 v3, 4, v3
    s_lshr_b32 s52, s20, 1
    s_lshl_b32 s52, s52, 6
    s_and_b32 s53, s20, 1
    s_lshl_b32 s53, s53, 3
    s_add_u32 s52, s52, s53
    s_lshl_b32 s53, s50, 7
    s_add_u32 s52, s52, s53
    s_lshl_b32 s52, s52, 10
    v_add3_u32 v10, v2, v3, s52
    v_xor_b32 v11, 64, v10
    v_add_u32 v11, 2048, v11
    v_add_u32 v12, 4096, v10
    v_add_u32 v13, 4096, v11
    v_lshrrev_b32 v2, 3, v1
    v_lshlrev_b32 v2, 10, v2
    s_lshl_b32 s52, s51, 6
    s_lshl_b32 s53, s20, 4
    s_add_u32 s52, s52, s53
    s_lshl_b32 s52, s52, 10
    v_add3_u32 v14, v2, v3, s52
    v_xor_b32 v15, 64, v14
    v_add_u32 v15, 8192, v15
    s_lshl_b32 s60, s20, 12
    s_lshl_b32 s61, s20, 11
    v_and_b32 v9, 31, v1
    s_and_b32 s63, s20, 1
    s_lshl_b32 s63, s63, 5
    s_lshl_b32 s52, s51, 6
    s_add_u32 s52, s52, s63
    v_add_u32 v5, s52, v9
    v_lshlrev_b32 v5, 1, v5
    s_waitcnt lgkmcnt(0)
    """)
    a(f"s_add_u32 s52, s46, {TAG_OFF}\ns_addc_u32 s53, s47, 0\ns_load_dword s3, s[52:53], 0")
    a.vmop(f"global_load_ushort v{T}, v5, s[12:13]", "par")
    a.vmop(f"global_load_ushort v{T+1}, v5, s[14:15]", "par")
    a.vmop(f"global_load_ushort v{T+2}, v5, s[16:17]", "par")
    a.srd(24, 4, 2097152); a.srd(28, 8, 524288); a.srd(32, 10, 524288)
    pieces = [(10 + i, 24, 'x', 60, i * 1024) for i in range(4)] + \
             [(14 + i, 28, 'x', 61, 16384 + i * 1024) for i in range(2)] + \
             [(14 + i, 32, 'x', 61, 16384 + 8192 + i * 1024) for i in range(2)]
    SCR = 65536
    CS = [98304, 131072, 0, 32768]
    vEW, vER, vEG, vTW, vTR, vL16, vFL, vXO, vOO, vDO, vTAG, vPF, vXF, DS = range(AD, AD + 14)
    XR = 208; OUT = 224
    CR = 200
    def mid():
        a.srd(36, 46, 268435456); a.srd(40, 88, 8388608); a.srd(92, 84, 524288); a.srd(96, 86, 524288)
        a(f"s_lshl_b32 s48, s51, 14\ns_add_u32 s48, s48, {E_OFF}")
        a.srd_off(64, 46, "s48", 16384)
        a(f"""
        v_lshrrev_b32 v8, 5, v1
        v_bfe_u32 v4, v1, 1, 3
        v_xor_b32 v3, v8, v4
        v_lshlrev_b32 v3, 4, v3
        v_lshl_add_u32 v3, v9, 7, v3
        s_lshr_b32 s62, s20, 1
        s_lshl_b32 s48, s62, 13
        s_lshl_b32 s49, s63, 7
        s_add_u32 s49, s49, 16384
        """)
        for ks in range(4):
            a(f"v_xor_b32 v4, {32*ks}, v3\nv_add_u32 v{XA+ks}, s48, v4\nv_add_u32 v{BA+ks}, s49, v4")
        a(f"""
        v_add_u32 v2, s63, v9
        v_lshlrev_b32 v3, 3, v2
        v_add_u32 v{vER}, {SCR}, v3
        v_lshlrev_b32 v4, 9, v8
        s_lshl_b32 s48, s62, 10
        v_add3_u32 v{vEW}, v4, v{vER}, s48
        s_sub_u32 s54, 15, s50
        s_lshl_b32 s54, s54, 10
        v_lshlrev_b32 v{vEG}, 4, v2
        v_lshlrev_b32 v{vL16}, 4, v1
        v_and_b32 v{vFL}, 15, v1
        v_lshlrev_b32 v{vFL}, 2, v{vFL}
        """)
        a(f"""
        s_lshl_b32 s48, s20, 13
        s_add_u32 s48, s48, {SCR}
        v_lshlrev_b32 v3, 2, v8
        v_and_b32 v4, 7, v1
        v_xor_b32 v3, v3, v4
        v_lshlrev_b32 v3, 4, v3
        v_lshl_add_u32 v3, v9, 7, v3
        v_add_u32 v{vTW}, s48, v3
        v_bfe_u32 v4, v1, 2, 2
        v_lshl_add_u32 v3, v8, 3, v4
        v_lshlrev_b32 v3, 7, v3
        v_bfe_u32 v5, v1, 4, 1
        v_lshlrev_b32 v5, 1, v5
        v_bfe_u32 v6, v1, 1, 1
        v_add_u32 v5, v5, v6
        v_xor_b32 v5, v5, v4
        v_lshl_add_u32 v3, v5, 4, v3
        v_and_b32 v6, 1, v1
        v_lshl_add_u32 v3, v6, 3, v3
        v_add_u32 v{vTR}, s48, v3
        """)
        a(f"""
        s_lshl_b32 s48, s50, 2
        s_add_u32 s48, s48, s20
        s_lshl_b32 s90, s48, 16
        s_add_u32 s90, s90, {H_OFF}
        s_lshl_b32 s48, s48, 5
        v_lshl_add_u32 v2, v8, 2, s48
        s_lshl_b32 s49, s51, 7
        v_lshl_add_u32 v{vDO}, v9, 2, s49
        v_lshl_add_u32 v{vXO}, v2, 10, v{vDO}
        v_lshlrev_b32 v3, 1, v{vDO}
        v_lshl_add_u32 v{vOO}, v2, 12, v3
        v_and_b32 v3, 15, v1
        v_xor_b32 v3, v3, v8
        v_lshlrev_b32 v3, 4, v3
        v_lshl_add_u32 v3, v9, 10, v3
        """)
        for q in range(8): a(f"v_xor_b32 v{CR+q}, {32*q}, v3")
        a(f"""
        s_lshl_b32 s91, s51, 6
        s_lshl_b32 s48, s20, 4
        s_add_u32 s91, s91, s48
        s_lshl_b32 s91, s91, 10
        s_lshl_b32 s44, s20, 13
        s_and_b32 s45, s20, 1
        s_lshl_b32 s45, s45, 7
        v_lshlrev_b32 v{vPF}, 7, v1
        s_lshl_b32 s48, s51, 6
        s_and_b32 s49, s50, 3
        s_lshl_b32 s49, s49, 4
        s_add_u32 s48, s48, s49
        s_lshl_b32 s48, s48, 10
        s_lshl_b32 s49, s45, 6
        s_add_u32 s48, s48, s49
        v_add_u32 v{vPF}, s48, v{vPF}
        """)
        a.wait(vm="par")
        Lr, Li, dt = T, T + 1, T + 2
        a(f"""
        v_lshlrev_b32 v{Lr}, 16, v{Lr}
        v_lshlrev_b32 v{Li}, 16, v{Li}
        v_lshlrev_b32 v{dt}, 16, v{dt}
        v_mul_f32 v{dt}, {LOG2E}, v{dt}
        v_exp_f32 v{dt}, v{dt}
        v_cvt_pk_bf16_f32 v{dt}, v{dt}, v{dt}
        v_lshlrev_b32 v{dt}, 16, v{dt}
        v_mul_f32 v{T+3}, v{dt}, v{Lr}
        v_mul_f32 v{T+4}, v{dt}, v{Li}
        v_mul_f32 v{T+3}, {LOG2E}, v{T+3}
        v_exp_f32 v{T+3}, v{T+3}
        v_mul_f32 v{T+4}, {INV2PI}, v{T+4}
        v_rndne_f32 v{T+5}, v{T+4}
        v_sub_f32 v{T+4}, v{T+4}, v{T+5}
        v_cos_f32 v{T+5}, v{T+4}
        v_sin_f32 v{T+6}, v{T+4}
        v_mul_f32 v{LAM}, v{T+3}, v{T+5}
        v_mul_f32 v{LAM+1}, v{T+3}, v{T+6}
        v_mul_f32 v{T+3}, v{Lr}, v{Lr}
        v_fma_f32 v{T+3}, v{Li}, v{Li}, v{T+3}
        v_rcp_f32 v{T+3}, v{T+3}
        v_add_f32 v{T+4}, -1.0, v{LAM}
        v_mul_f32 v{T+5}, v{T+4}, v{Lr}
        v_fma_f32 v{T+5}, v{LAM+1}, v{Li}, v{T+5}
        v_mul_f32 v{T+6}, v{LAM+1}, v{Lr}
        v_fma_f32 v{T+6}, -v{T+4}, v{Li}, v{T+6}
        v_add_f32 v{T+3}, v{T+3}, v{T+3}
        v_mul_f32 v{C2}, v{T+5}, v{T+3}
        v_mul_f32 v{C2+1}, v{T+6}, v{T+3}
        """)
        a(cmul(T, LAM, LAM)); a(cmul(T + 2, T, T)); a(cmul(T, T + 2, T + 2)); a(cmul(L16, T, T))
        a(cmul(L32, L16, L16)); a(cmul(T + 4, L32, L32))
        a(cmul(MU, T + 4, T + 4))
        a(cmul(T, MU, MU)); a(cmul(T + 2, T, T)); a(cmul(MU8, T + 2, T + 2))
        a(f"""
        v_cmp_lt_u32 vcc, 31, v1
        v_cndmask_b32 v{T}, 1.0, v{L32}, vcc
        v_cndmask_b32 v{T+1}, 0, v{L32+1}, vcc
        v_cmp_lt_u32 vcc, 127, v0
        v_cndmask_b32 v{T+2}, 1.0, v{T+4}, vcc
        v_cndmask_b32 v{T+3}, 0, v{T+5}, vcc
        """)
        a(cmul(T + 6, T, T + 2)); a(cmul(T, T + 6, C2)); a(cmul(T + 2, T, L16))
        a(f"v_mov_b32 v{WA}, v{T}\nv_mov_b32 v{WA+1}, v{T+2}\nv_mov_b32 v{WB}, v{T+1}\nv_mov_b32 v{WB+1}, v{T+3}")
        a(f"s_waitcnt lgkmcnt(0)\ns_add_u32 s3, s3, 1\ns_max_u32 s3, s3, 1\nv_mov_b32 v{vTAG}, s3\nv_lshlrev_b32 v2, 3, v8")
        for jj in range(8):
            a(f"v_add_u32 v3, {jj+1}, v2\nv_cmp_ge_u32 vcc, s50, v3\nv_cndmask_b32 v{EX+jj}, 0, v{vTAG}, vcc")
        xcc_publish(a, 0, 2)
    D = opt['D']
    def reads(n):
        f = FR + 16 * (n % (D + 1)); ks = n % 4
        a.dsop(f"ds_read_b128 {v(f,4)}, v{XA+ks}", ("rd", n))
        a.dsop(f"ds_read_b128 {v(f+8,4)}, v{BA+ks}", ("rd", n))
        a.dsop(f"ds_read_b128 {v(f+12,4)}, v{BA+ks} offset:8192", ("rd", n))
        a.dsop(f"ds_read_b128 {v(f+4,4)}, v{XA+ks} offset:4096", ("rd", n))
    def mfmas(n):
        f = FR + 16 * (n % (D + 1))
        out = []
        for i in range(2):
            for part in range(2):
                d = ACC + 32 * part + 16 * i
                out.append(f"{MF} {v(d,16)}, {v(f+4*i,4)}, {v(f+8+4*part,4)}, {'0' if n == 0 else v(d,16)}")
        return out
    def cgroup(g):
        part, n = g >> 1, g & 1
        out = []
        for i in range(8):
            out.append(('vm', f"s_add_u32 s48, s45, {16*i}\nv_xor_b32 v{2+(i&1)}, s48, v{vL16}\n"
                        f"s_add_u32 m0, s44, {CS[g] + i*1024}\ns_add_u32 s49, s91, {i*2048 + n*1024}\n"
                        f"buffer_load_dwordx4 v{2+(i&1)}, s[{92+4*part}:{95+4*part}], s49 offen lds", ("c", g)))
        return out
    LPF = a.new_label("Lcpf"); LPF2 = a.new_label("Lcpf")
    cpf = [('vm', f"s_cmp_ge_u32 s20, 2\ns_cbranch_scc1 {LPF}\nbuffer_load_dword v4, v{vPF}, s[92:95], 0 offen\ns_branch {LPF2}\n{LPF}:\n"
                  f"buffer_load_dword v4, v{vPF}, s[96:99], 0 offen\n{LPF2}:", "pf")]
    xl = [('vm', f"global_load_dword v{DS}, v{vDO}, s[18:19]", "x")]
    for r4 in range(4):
        for r in range(4 * r4, 4 * r4 + 4):
            xl.append(('vm', f"s_mov_b32 s49, {r4*8192}\nbuffer_load_dword v{XR+r}, v{vXO}, s[24:27], s49 offen offset:{(r&3)*1024}", "x"))
    extra = {4: cpf, 5: cgroup(0), 6: cgroup(1), 7: cgroup(2) + cgroup(3)}
    if opt['noc']: extra = {}
    if opt['touch']:
        tch = [('vm', f"""s_lshl_b32 s48, s50, 2
        s_and_b32 s49, s20, 2
        s_add_u32 s48, s48, s49
        s_lshl_b32 s48, s48, 6
        s_lshl_b32 s49, s51, 2
        s_add_u32 s48, s48, s49
        s_and_b32 s49, s20, 1
        s_lshl_b32 s49, s49, 1
        s_add_u32 s48, s48, s49
        s_lshl_b32 s48, s48, 10
        s_add_u32 s48, s48, {H_OFF}
        v_and_b32 v2, 15, v1
        v_lshlrev_b32 v2, 7, v2
        v_lshrrev_b32 v3, 4, v1
        v_lshl_add_u32 v2, v3, 15, v2
        buffer_load_dword v5, v2, s[36:39], s48 offen sc1""", "tch")]
        extra[4] = extra.get(4, []) + tch
    fill = ring_loop(a, S, stage, pieces, list(range(XA, XA + 8)), reads, mfmas, lambda c: c == 7, mid, extra, 20, 36, endbar=True)
    fill.flush(a, dma=False)
    a.stamp(2)
    RE, IM = ACC, ACC + 32
    cur_r, cur_i = RE, IM
    for st in range(1, 16):
        nr = T + 4 * (st & 1); ni = nr + 2
        a(pkb(ni, LAM, 1, cur_r, IM + 2 * st))
        a(pkb(nr, LAM, 1, cur_i, RE + 2 * st, neg=True))
        a(pkb(nr, LAM, 0, cur_r, nr))
        a(pkb(ni, LAM, 0, cur_i, ni))
        cur_r, cur_i = nr, ni
    EA, EE = T + 8, T + 10
    a(f"v_mov_b32 v{EA}, v{cur_r}\nv_mov_b32 v{EA+1}, v{cur_i}\nv_mov_b32 v{EE}, v{cur_r+1}\nv_mov_b32 v{EE+1}, v{cur_i+1}")
    a(cfma(EE, L16, EA, EE))
    a.dsop(f"ds_write_b64 v{vEW}, {v(EE,2)}", "e")
    a.wait(lg="all"); a("s_barrier")
    F = FR
    for b in range(4):
        a.dsop(f"ds_read_b64 {v(F+2*b,2)}, v{vER} offset:{512*b}", "e")
    a(f"v_mov_b32 v{F+13}, s3\nv_mov_b32 v{F+15}, s3")
    a.wait(lg="all")
    a(cfma(F + 2, L32, F, F + 2)); a(cfma(F + 4, L32, F + 2, F + 4)); a(cfma(F + 6, L32, F + 4, F + 6))
    L = a.new_label("Lpub")
    a(f"v_mov_b32 v{F+12}, v{F+6}\nv_mov_b32 v{F+14}, v{F+7}")
    a(f"s_cmp_ge_u32 s20, 2\ns_cbranch_scc1 {L}\ns_mov_b32 exec_hi, 0")
    a(f"buffer_store_dwordx4 {v(F+12,4)}, v{vEG}, s[64:67], s54 offen sc1\ns_mov_b64 exec, -1")
    a.label(L)
    a.stamp(3)
    fill.flush(a)
    a.emit(xcc_load(vXF, vFL, 2))
    for it in xl: a.emit(it)
    a("s_barrier")
    a(f"""
    v_cmp_lt_u32 vcc, 31, v1
    v_cndmask_b32 v{F+8}, 0, v{F}, vcc
    v_cndmask_b32 v{F+9}, 0, v{F+1}, vcc
    v_cndmask_b32 v{F+10}, v{F+2}, v{F+4}, vcc
    v_cndmask_b32 v{F+11}, v{F+3}, v{F+5}, vcc
    v_cmp_lt_u32 vcc, 127, v0
    v_cndmask_b32 v{F+8}, v{F+8}, v{F+10}, vcc
    v_cndmask_b32 v{F+9}, v{F+9}, v{F+11}, vcc
    """)
    a(cfma(EA, L16, F + 8, EA))
    a(cmul(F + 10, C2, F + 8)); a(cmul(F + 16, C2, EA))
    PR, PI = T + 12, T + 14
    a(f"v_mov_b32 v{PR}, v{F+10}\nv_mov_b32 v{PR+1}, v{F+16}\nv_mov_b32 v{PI}, v{F+11}\nv_mov_b32 v{PI+1}, v{F+17}")
    for st in range(16):
        r_, i_ = RE + 2 * st, IM + 2 * st
        t = T + 2 * (st & 1)
        a(f"v_pk_mul_f32 {v(t,2)}, {v(C2,2)}, {v(r_,2)} op_sel:[1,0] op_sel_hi:[1,1]")
        a(f"v_pk_mul_f32 {v(r_,2)}, {v(C2,2)}, {v(r_,2)} op_sel:[0,0] op_sel_hi:[0,1]")
        a(pkb(r_, C2, 1, i_, r_, neg=True))
        a(pkb(i_, C2, 0, i_, t))
    a(f"v_lshlrev_b32 v4, 13, v8\nv_add3_u32 v4, v4, v{vEG}, s54\nv_add_u32 v4, 1024, v4\nv_add_u32 v5, 4096, v4")
    LP = a.new_label("Lpoll"); LD = a.new_label("Lpolld")
    a(f"s_mov_b32 s59, {opt['spin']}")
    a.label(LP)
    for jj in range(7, -1, -1):
        a(f"buffer_load_dwordx4 {v(F+4*jj,4)}, v{4+(jj>>2)}, s[64:67], 0 offen offset:{1024*(jj&3)} sc1")
    a("s_waitcnt vmcnt(0)"); a.vm.clear()
    a(f"v_xor_b32 v6, v{F+1}, v{EX}\nv_xor_b32 v7, v{F+3}, v{EX}")
    for jj in range(1, 8):
        a(f"v_bitop3_b32 v6, v{F+4*jj+1}, v{EX+jj}, v6 bitop3:0xbe\nv_bitop3_b32 v7, v{F+4*jj+3}, v{EX+jj}, v7 bitop3:0xbe")
    a("v_or_b32 v6, v6, v7\nv_cmp_ne_u32 vcc, 0, v6")
    a(f"s_cbranch_vccz {LD}\ns_sub_u32 s59, s59, 1\ns_cmp_eq_u32 s59, 0\ns_cbranch_scc1 {LD}\ns_branch {LP}")
    a.label(LD)
    a.stamp(4)
    for jj in range(6, -1, -1):
        d, s_ = F + 4 * jj, F + 4 * jj + 4
        a(f"v_fma_f32 v{d}, v{MU}, v{s_}, v{d}\nv_fma_f32 v{d+2}, v{MU}, v{s_+2}, v{d+2}")
        a(f"v_fma_f32 v{d}, -v{MU+1}, v{s_+2}, v{d}\nv_fma_f32 v{d+2}, v{MU+1}, v{s_}, v{d+2}")
    a(f"v_mov_b32 v{F+1}, v{F+2}\nv_mov_b32 v{F+3}, v{F+2}\nv_mov_b32 v{F+2}, v{F}")
    a(f"v_permlane32_swap_b32 v{F}, v{F+2}\nv_permlane32_swap_b32 v{F+1}, v{F+3}")
    a(cfma(F, MU8, F + 2, F))
    a(pkb(PR, F, 0, WA, PR)); a(pkb(PI, F, 0, WB, PI)); a(pkb(PR, F, 1, WB, PR, neg=True)); a(pkb(PI, F, 1, WA, PI))
    cur_r, cur_i = PR, PI
    def twrite(i):
        for part in range(2):
            ng = "-" if part else ""
            for ch in range(2):
                base = ACC + 32 * part + 16 * i + ch
                d = F + 16 * i + 8 * part + 4 * ch
                for q in range(4):
                    a(f"v_cvt_pk_bf16_f32 v{d+q}, {ng}v{base+4*q}, {ng}v{base+4*q+2}")
                a(f"v_xor_b32 v{6+ch}, {(2*ch+i)*16}, v{vTW}")
                a.dsop(f"ds_write_b128 v{6+ch}, {v(d,4)} offset:{part*4096}", "tw")
    for st in range(16):
        r_, i_ = RE + 2 * st, IM + 2 * st
        a(pkb(i_, LAM, 1, cur_r, i_))
        a(pkb(r_, LAM, 1, cur_i, r_, neg=True))
        a(pkb(r_, LAM, 0, cur_r, r_))
        a(pkb(i_, LAM, 0, cur_i, i_))
        cur_r, cur_i = r_, i_
        if st == 7: twrite(0)
    twrite(1)
    a(f"""
    s_lshl_b32 s52, s50, 2
    s_and_b32 s53, s20, 2
    s_add_u32 s52, s52, s53
    s_lshl_b32 s52, s52, 6
    s_lshl_b32 s53, s51, 2
    s_add_u32 s52, s52, s53
    s_and_b32 s53, s20, 1
    s_lshl_b32 s53, s53, 1
    s_add_u32 s52, s52, s53
    s_lshl_b32 s52, s52, 10
    s_add_u32 s52, s52, {H_OFF}
    v_xor_b32 v6, 64, v{vTR}
    """)
    a.wait(lg="all")
    G0 = ACC
    k = 0; frs = []
    for Tt in range(2):
        for part in range(2):
            for pg in range(2):
                d = G0 + 4 * k
                for ab in range(2):
                    ad = vTR if (Tt ^ ab) == 0 else 6
                    a.dsop(f"ds_read_b64_tr_b16 {v(d+2*ab,2)}, v{ad} offset:{(part*32 + 16*pg + 4*ab)*128}", ("tr", k))
                frs.append((k, d, Tt, part, pg)); k += 1
    a(f"""
    s_lshl_b32 s48, s50, 1
    s_add_u32 s48, s48, s62
    s_lshl_b32 s48, s48, 7
    s_add_u32 s48, s48, {FL_OFF}
    s_lshl_b32 s49, s51, 3
    s_lshr_b32 s53, s63, 3
    s_add_u32 s49, s49, s53
    v_mov_b32 v2, s49
    """)
    def hstores(sfx):
        for k, d, Tt, part, pg in frs:
            a(f"s_add_u32 s53, s52, {(Tt*64 + part*32)*1024}")
            a.wait(lg=("tr", k))
            a.vmop(f"buffer_store_dwordx4 {v(d,4)}, v{vL16}, s[36:39], s53 offen offset:{pg*1024}{sfx}", "h")
    def between():
        a.stamp(5)
        a("s_barrier")
    dual_store(a, vXF, hstores, "h", between, flag_store(vTAG, 2, 36, "s48"))
    a.stamp(6)
    poll_flags(a, vFL, 36, "s48", 4)
    a.stamp(7)
    def hload(ks):
        s = f"s_add_u32 s57, s90, {ks*1024}\n" if ks % 4 == 0 else ""
        if opt['rot2'] and s: s = f"s_lshl_b32 s57, s51, 13\ns_xor_b32 s57, s57, {ks*1024}\ns_add_u32 s57, s57, s90\n"
        return ('vm', s + f"buffer_load_dwordx4 {ar(4*ks,4)}, v{vL16}, s[36:39], s57 offen offset:{(ks%4)*1024}{['', ' sc1', ' sc0', ' nt'][opt['hld']]}", ("h", ks))
    NPRE = opt['npre']
    for ks in range(NPRE): a.emit(hload(ks))
    rest = [hload(ks) for ks in range(NPRE, 64)]
    a(f"v_lshlrev_b32 v28, 16, v{DS}\nv_and_b32 v29, 0xffff0000, v{DS}")
    sk = []
    for r in range(16):
        o = OUT + 2 * r
        sk += [f"v_lshlrev_b32 v{o}, 16, v{XR+r}", f"v_and_b32 v{o+1}, 0xffff0000, v{XR+r}",
               f"v_mul_f32 v{o}, v{o}, v28", f"v_mul_f32 v{o+1}, v{o+1}, v29",
               f"v_cvt_pk_bf16_f32 v{o+1}, v{o}, v{o+1}",
               f"v_lshlrev_b32 v{o}, 16, v{o+1}", f"v_and_b32 v{o+1}, 0xffff0000, v{o+1}"]
    skf = Filler(sk)
    FR2 = 96; D2 = 3
    for q in range(8): a(f"v_add_u32 v{CR+q}, {CS[0]}, v{CR+q}")
    def reads2(ks):
        f = FR2 + 8 * (ks % (D2 + 1)); pg = ks & 31
        if ks == 32:
            for q in range(8): a(f"v_subrev_u32 v{CR+q}, {CS[0]}, v{CR+q}")
        o = (pg >> 3) * 256
        a.dsop(f"ds_read_b128 {v(f,4)}, v{CR+(pg&7)} offset:{o}", ("rd", ks))
        a.dsop(f"ds_read_b128 {v(f+4,4)}, v{CR+(pg&7)} offset:{o + 32768}", ("rd", ks))
    for ks in range(D2): reads2(ks)
    for ks in range(64):
        if ks + D2 < 64: reads2(ks + D2)
        if rest: a.emit(rest.pop(0))
        a.wait(vm=("h", ks), lg=("rd", ks))
        f = FR2 + 8 * (ks % (D2 + 1))
        for n in range(2):
            a(f"{MF} {v(ACC+16*n,16)}, {ar(4*ks,4)}, {v(f+4*n,4)}, {'0' if ks == 0 else v(ACC+16*n,16)}")
            skf.run(a, 9)
    skf.flush(a)
    a.stamp(8)
    for r in range(16):
        o = OUT + 2 * r
        a(f"v_add_f32 v{o}, v{o}, v{ACC+r}\nv_add_f32 v{o+1}, v{o+1}, v{ACC+16+r}")
        a(f"s_mov_b32 s58, {(8*(r>>2) + (r&3))*4096}")
        a.vmop(f"buffer_store_dwordx2 {v(o,2)}, v{vOO}, s[40:43], s58 offen", "out")
    tag_finish(a, 0, lambda L: f"s_lshl_b32 s48, s50, 5\ns_add_u32 s48, s48, s51\ns_add_u32 s48, s48, s20\ns_cmp_lg_u32 s48, {15*32}\ns_cbranch_scc1 {L}")
    a.stamp(9)
    a.stamp_out(10)

def softmax_items(units, tmp, pk=True):
    seqs = []
    for u, (P, O) in enumerate(units):
        t = tmp + 4 * u
        s = []
        s.append(f"v_max3_f32 v{t}, v{P}, v{P+1}, v{P+2}")
        s.append(f"v_max3_f32 v{t+1}, v{P+3}, v{P+4}, v{P+5}")
        s.append(f"v_max3_f32 v{t}, v{t}, v{P+6}, v{P+7}")
        s.append(f"v_max3_f32 v{t+1}, v{t+1}, v{P+8}, v{P+9}")
        s.append(f"v_max3_f32 v{t}, v{t}, v{P+10}, v{P+11}")
        s.append(f"v_max3_f32 v{t+1}, v{t+1}, v{P+12}, v{P+13}")
        s.append(f"v_max3_f32 v{t}, v{t}, v{P+14}, v{P+15}")
        s.append(f"v_max_f32 v{t}, v{t}, v{t+1}")
        s.append(f"v_mul_f32 v{t}, s69, v{t}")
        if pk:
            for q in range(8):
                s.append(f"v_pk_fma_f32 {v(P+2*q,2)}, {v(P+2*q,2)}, s[68:69], {v(t,2)} op_sel:[0,0,0] op_sel_hi:[1,0,0]")
            for q in range(16):
                s.append(f"v_exp_f32 v{P+q}, v{P+q}")
            s.append(f"v_pk_add_f32 {v(t,2)}, {v(P,2)}, {v(P+2,2)}")
            s.append(f"v_pk_add_f32 {v(t+2,2)}, {v(P+4,2)}, {v(P+6,2)}")
            s.append(f"v_pk_add_f32 {v(t,2)}, {v(t,2)}, {v(P+8,2)}")
            s.append(f"v_pk_add_f32 {v(t+2,2)}, {v(t+2,2)}, {v(P+10,2)}")
            s.append(f"v_pk_add_f32 {v(t,2)}, {v(t,2)}, {v(P+12,2)}")
            s.append(f"v_pk_add_f32 {v(t+2,2)}, {v(t+2,2)}, {v(P+14,2)}")
            s.append(f"v_pk_add_f32 {v(t,2)}, {v(t,2)}, {v(t+2,2)}")
            s.append(f"v_add_f32 v{t}, v{t}, v{t+1}")
            s.append(f"v_rcp_f32 v{t}, v{t}")
            for q in range(8):
                s.append(f"v_pk_mul_f32 {v(P+2*q,2)}, {v(P+2*q,2)}, {v(t,2)} op_sel:[0,0] op_sel_hi:[1,0]")
        else:
            for q in range(16):
                s.append(f"v_fma_f32 v{P+q}, v{P+q}, s68, v{t}")
                s.append(f"v_exp_f32 v{P+q}, v{P+q}")
                if q == 3: s.append(f"v_add_f32 v{t+1}, v{P}, v{P+1}")
                if q == 5: s.append(f"v_add_f32 v{t+2}, v{P+2}, v{P+3}")
                if q >= 6: s.append(f"v_add_f32 v{t+1+(q&1)}, v{t+1+(q&1)}, v{P+q-2}")
            s.append(f"v_add_f32 v{t+1}, v{t+1}, v{P+14}")
            s.append(f"v_add_f32 v{t+2}, v{t+2}, v{P+15}")
            s.append(f"v_add_f32 v{t}, v{t+1}, v{t+2}")
            s.append(f"v_rcp_f32 v{t}, v{t}")
            for q in range(16):
                s.append(f"v_mul_f32 v{P+q}, v{t}, v{P+q}")
        for q in range(8):
            s.append(f"v_cvt_pk_bf16_f32 v{O+q}, v{P+2*q}, v{P+2*q+1}")
        seqs.append(s)
    out = []
    for i in range(len(seqs[0])):
        for s in seqs: out.append(s[i])
    return out

def role_B(a):
    a.reset()
    S, stage = 4, 24576
    WV_L = 98304
    WQ_L = 0
    SC_L = 65536
    a("""
    s_load_dwordx4 s[4:7], s[0:1], 72
    s_load_dwordx2 s[46:47], s[0:1], 120
    s_load_dwordx4 s[8:11], s[0:1], 88
    s_load_dwordx2 s[88:89], s[0:1], 104
    """)
    tilemap(a, opt['bmap'], 50, 51, 55)
    XA, WAD = 20, 24
    WP = 28
    a("""
    v_lshrrev_b32 v2, 3, v1
    v_and_b32 v3, 7, v1
    v_lshrrev_b32 v4, 4, v1
    v_xor_b32 v5, v3, v4
    v_lshlrev_b32 v5, 4, v5
    v_lshl_add_u32 v5, v2, 10, v5
    s_lshl_b32 s52, s50, 7
    s_lshl_b32 s53, s20, 5
    s_add_u32 s52, s52, s53
    s_lshl_b32 s52, s52, 10
    v_add_u32 v10, s52, v5
    v_xor_b32 v11, 64, v10
    v_add_u32 v11, 8192, v11
    v_add_u32 v12, 16384, v10
    v_add_u32 v13, 16384, v11
    v_and_b32 v4, 1, v4
    v_lshlrev_b32 v4, 2, v4
    v_xor_b32 v4, v3, v4
    v_lshlrev_b32 v4, 4, v4
    v_mul_u32_u24 v5, 3072, v2
    s_lshl_b32 s52, s51, 7
    s_mul_i32 s53, s20, 49152
    s_add_u32 s52, s52, s53
    v_add3_u32 v14, v4, v5, s52
    v_add_u32 v16, 1024, v14
    v_add_u32 v17, 25600, v14
    s_lshl_b32 s60, s20, 12
    s_lshl_b32 s61, s20, 11
    v_lshl_add_u32 v25, v2, 10, v4
    s_waitcnt lgkmcnt(0)
    """)
    a(f"s_add_u32 s52, s46, {TAG_OFF + 128}\ns_addc_u32 s53, s47, 0\ns_load_dword s3, s[52:53], 0")
    a.srd(24, 4, 2097152); a.srd(28, 6, 1572864)
    pieces = [(10 + i, 24, 'x', 60, i * 1024) for i in range(4)] + [(16 + i, 28, 'w', 61, 16384 + i * 1024) for i in range(2)]
    def wimg(c, base, vr, tag):
        return dma_items(c, base + c * 8192, [(vr + i, 28, 'w', 61, i * 1024) for i in range(2)], tag, wreg=96)
    KQ, V, PB, OB, WF = 64, 96, 128, 192, 224
    CV, TM = 36, 52
    vPW0, vPW1, vPR, vWI = 60, 61, 62, 63
    vKW, vKR, vXW, vXZ, vXR, vXRZ, vFL, vTAG, vOO, vXF = range(240, 250)
    vONE = 252
    def mid():
        a(f"""
        v_add_u32 v15, 24576, v14
        v_add_u32 v18, 2048, v14
        v_add_u32 v19, 2048, v15
        v_and_b32 v9, 31, v1
        v_lshrrev_b32 v8, 5, v1
        s_and_b32 s63, s20, 1
        s_lshr_b32 s62, s20, 1
        s_lshl_b32 s48, s51, 2
        s_lshl_b32 s52, s63, 1
        s_add_u32 s48, s48, s52
        s_add_u32 s49, s48, s62
        v_lshrrev_b32 v2, 3, v9
        v_and_b32 v3, 3, v9
        v_lshl_add_u32 v2, v2, 2, v3
        v_lshlrev_b32 v2, 1, v2
        v_lshl_add_u32 v2, v8, 7, v2
        s_lshl_b32 s52, s48, 9
        v_add_u32 v2, s52, v2
        """)
        for h in range(2):
            for j in range(8):
                d = 8 * (j >> 2) + (j & 3)
                a.vmop(f"global_load_ushort v{36+8*h+j}, v2, s[8:9] offset:{h*512 + d*32}", "wp")
        a.srd(36, 46, 268435456); a.srd(40, 88, 8388608); a.srd(92, 10, 524288)
        a(f"s_mul_i32 s52, s49, {KV_HEAD}\ns_add_u32 s52, s52, {KV_OFF}\ns_mul_i32 s54, s50, {KV_RB}")
        a.srd_off(64, 46, "s52", KV_HEAD)
        a(f"""
        v_lshlrev_b32 v26, 4, v1
        v_lshlrev_b32 v27, 2, v1
        s_mov_b32 s68, {LOG2E}
        s_mov_b32 s69, {LOG2E | 0x80000000}
        v_bfe_u32 v4, v1, 1, 3
        v_xor_b32 v4, v8, v4
        v_lshlrev_b32 v4, 4, v4
        v_lshl_add_u32 v4, v9, 7, v4
        s_lshl_b32 s52, s62, 13
        """)
        for ks in range(4):
            a(f"v_xor_b32 v5, {32*ks}, v4\nv_add_u32 v{XA+ks}, s52, v5")
        a(f"""
        v_bfe_u32 v4, v1, 2, 2
        v_lshl_add_u32 v5, v8, 3, v4
        v_lshlrev_b32 v5, 7, v5
        v_lshrrev_b32 v6, 1, v4
        v_xor_b32 v6, s63, v6
        v_lshl_add_u32 v5, v6, 6, v5
        v_bfe_u32 v6, v1, 4, 1
        v_lshl_add_u32 v5, v6, 5, v5
        v_and_b32 v3, 3, v1
        v_lshl_add_u32 v{vWI}, v3, 3, v5
        v_add_u32 v{WAD}, 16384, v{vWI}
        v_lshlrev_b32 v7, 1, v6
        v_bfe_u32 v2, v1, 1, 1
        v_add_u32 v7, v7, v2
        s_lshl_b32 s52, s20, 13
        s_add_u32 s52, s52, {SC_L}
        v_lshlrev_b32 v3, 1, v8
        v_bfe_u32 v5, v1, 1, 2
        v_xor_b32 v6, v3, v5
        v_lshlrev_b32 v6, 4, v6
        v_lshl_add_u32 v6, v9, 6, v6
        v_add_u32 v{vPW0}, s52, v6
        v_xor_b32 v{vPW1}, 16, v{vPW0}
        v_lshl_add_u32 v6, v8, 2, v4
        v_lshrrev_b32 v2, 1, v6
        v_xor_b32 v2, v2, v7
        v_lshlrev_b32 v2, 4, v2
        v_lshl_add_u32 v2, v6, 6, v2
        v_and_b32 v3, 1, v1
        v_lshl_add_u32 v2, v3, 3, v2
        v_add_u32 v{vPR}, s52, v2
        v_add_u32 v{vXW}, s52, v26
        v_add_u32 v{vXZ}, s52, v27
        v_xor_b32 v{vXR}, 16384, v{vXW}
        v_xor_b32 v{vXRZ}, 16384, v{vXZ}
        """)
        a(f"""
        v_xor_b32 v6, v8, v5
        v_lshlrev_b32 v6, 4, v6
        v_lshl_add_u32 v6, v9, 6, v6
        s_add_u32 s53, s52, 4096
        v_add_u32 v{vKW}, s53, v6
        v_lshl_add_u32 v6, v8, 4, v4
        v_lshlrev_b32 v6, 6, v6
        v_lshrrev_b32 v2, 1, v4
        v_xor_b32 v2, v2, v7
        v_lshl_add_u32 v6, v2, 4, v6
        v_lshl_add_u32 v6, v3, 3, v6
        s_lshl_b32 s53, s63, 13
        s_add_u32 s53, s53, {SC_L + 4096}
        v_add_u32 v{vKR}, s53, v6
        v_and_b32 v{vFL}, 15, v1
        v_lshlrev_b32 v{vFL}, 2, v{vFL}
        """)
        for q in range(4): a(f"v_mov_b32 v{vONE+q}, 0x3f803f80")
        tilemap(a, 2, 84, 85, 86)
        a(f"""
        s_lshl_b32 s52, s84, 2
        s_add_u32 s52, s52, s20
        s_lshl_b32 s90, s52, 15
        s_add_u32 s90, s90, {O_OFF}
        s_lshl_b32 s52, s52, 5
        v_lshl_add_u32 v2, v8, 2, s52
        s_lshl_b32 s53, s85, 8
        s_add_u32 s53, s53, 2048
        v_lshl_add_u32 v3, v9, 2, s53
        v_lshl_add_u32 v{vOO}, v2, 12, v3
        s_lshl_b32 s91, s85, 7
        s_lshl_b32 s52, s20, 13
        s_add_u32 s91, s91, s52
        s_lshl_b32 s44, s20, 10
        s_and_b32 s45, s84, 3
        s_lshl_b32 s45, s45, 2
        s_waitcnt lgkmcnt(0)
        s_add_u32 s3, s3, 1
        s_max_u32 s3, s3, 1
        v_mov_b32 v{vTAG}, s3
        """)
        xcc_publish(a, 1, 2)
    D = opt['D']
    def reads(n):
        ks = n % 4; f = WF + 4 * (n % (D + 1))
        a.dsop(f"ds_read_b128 {ar(8*n,4)}, v{XA+ks}", ("rd", n))
        for ab in range(2):
            a.dsop(f"ds_read_b64_tr_b16 {v(f+2*ab,2)}, v{WAD} offset:{ks*2048 + ab*512}", ("rd", n))
        a.dsop(f"ds_read_b128 {ar(8*n+4,4)}, v{XA+ks} offset:4096", ("rd", n))
    def mfmas(n):
        f = WF + 4 * (n % (D + 1))
        return [f"{MF} {v(KQ+16*i,16)}, {v(f,4)}, {ar(8*n+4*i,4)}, {'0' if n == 0 else v(KQ+16*i,16)}" for i in range(2)]
    wv = []
    for c in range(8): wv += wimg(c, WV_L, 18, ("wv", c >> 1))
    extra = {4: wv}
    if opt['touch']:
        extra[4] = wv + [('vm', f"""s_lshl_b32 s52, s50, 2
        s_lshl_b32 s53, s62, 1
        s_add_u32 s52, s52, s53
        s_lshl_b32 s52, s52, 5
        s_add_u32 s52, s52, s48
        s_lshl_b32 s52, s52, 10
        s_add_u32 s52, s52, {O_OFF}
        v_and_b32 v2, 15, v1
        v_lshlrev_b32 v2, 7, v2
        v_bfe_u32 v3, v1, 4, 1
        v_lshl_add_u32 v2, v3, 15, v2
        buffer_load_dword v5, v2, s[36:39], s52 offen sc1""", "tch")]
    fill = ring_loop(a, S, stage, pieces, list(range(XA, XA + 5)), reads, mfmas, lambda c: True, mid, extra, 40, 56)
    fill.flush(a)
    a.stamp(2)
    DW = 3
    def wpass(base, tiles, acc, xfirst, fill, bars, budget):
        a(f"v_add_u32 v{WAD}, {base}, v{vWI}")
        key = (base, tuple(tiles))
        def rd(n):
            if n in bars:
                bars[n]()
            f = WF + 4 * (n % (DW + 1))
            for ab in range(2):
                a.dsop(f"ds_read_b64_tr_b16 {v(f+2*ab,2)}, v{WAD} offset:{n*2048 + ab*512}", ("rw", key, n))
        for n in range(DW): rd(n)
        for n in range(32):
            if n + DW < 32: rd(n + DW)
            a.wait(lg=("rw", key, n))
            f = WF + 4 * (n % (DW + 1))
            for i in tiles:
                x, w = ar(8 * n + 4 * i, 4), v(f, 4)
                A_, B_ = (x, w) if xfirst else (w, x)
                a(f"{MF} {v(acc+16*i,16)}, {A_}, {B_}, {'0' if n == 0 else v(acc+16*i,16)}")
                fill.run(a, budget)
    def phi_items(src, tiles):
        out = []
        for i in tiles:
            for h in range(2):
                u = 2 * i + h
                for q in range(4):
                    out.append(f"v_cvt_pk_bf16_f32 v{CV+4*u+q}, v{src+16*i+8*h+2*q}, v{src+16*i+8*h+2*q+1}")
        for i in tiles:
            for h in range(2):
                u = 2 * i + h
                out.append(f"{MF} {v(PB+16*u,16)}, {v(WP+4*h,4)}, {v(CV+4*u,4)}, 0")
        return out
    a.wait(vm="wp")
    a("v_bfe_u32 v2, v1, 2, 1\nv_mul_u32_u24 v2, 0x8000, v2\nv_lshl_or_b32 v2, v2, 16, v2")
    for r in range(8):
        a(f"v_lshl_or_b32 v{WP+r}, v{36+2*r+1}, 16, v{36+2*r}\nv_xor_b32 v{WP+r}, v2, v{WP+r}")
    items = phi_items(KQ, (0, 1))
    wq = []
    for c in range(8): wq += wimg(c, WQ_L, 14, "wq")
    PF = KQ
    ZD = PB + 32
    for pr in range(2):
        items += softmax_items([(PB + 16 * u, OB + 8 * u) for u in (2 * pr, 2 * pr + 1)], TM, pk=False)
        for u in (2 * pr, 2 * pr + 1):
            items.append(('ds', f"ds_write_b128 v{vPW0}, {v(OB+8*u,4)} offset:{2048*u}", ("pw", pr)))
            items.append(('ds', f"ds_write_b128 v{vPW1}, {v(OB+8*u+4,4)} offset:{2048*u}", ("pw", pr)))
        for u in (2 * pr, 2 * pr + 1):
            for i2 in range(2):
                for ab in range(2):
                    items.append(('ds', f"ds_read_b64_tr_b16 {v(PF+8*u+4*i2+2*ab,2)}, v{vPR} offset:{2048*u + (16*i2+8*ab)*64}", ("pf", u)))
    for u in range(4):
        i, h = u >> 1, u & 1
        items.append(('wait', None, ("pf", u)))
        for i2 in range(2):
            first = (i == 0 and i2 == 0)
            items.append(f"{MF} {v(ZD+16*h,16)}, {v(vONE,4)}, {v(PF+8*u+4*i2,4)}, {'0' if first else v(ZD+16*h,16)}")
    fill = Filler(items, wq)
    def wvbar(q):
        def f():
            a.wait(vm=("wv", q), lg=("all" if q == 0 else None)); a("s_barrier")
        return f
    wpass(WV_L, (0, 1), V, True, fill, {8 * q: wvbar(q) for q in range(4)}, 21)
    fill.flush(a)
    a.stamp(3)
    for i in range(2):
        for q in range(8):
            a(f"v_cvt_pk_bf16_f32 v{V+16*i+q}, v{V+16*i+2*q}, v{V+16*i+2*q+1}")
    KVD = PB
    for u in range(4):
        i, h = u >> 1, u & 1
        for i2 in range(2):
            first = (i == 0 and i2 == 0)
            a(f"{MF} {v(KVD+16*h,16)}, {v(V+16*i+4*i2,4)}, {v(PF+8*u+4*i2,4)}, {'0' if first else v(KVD+16*h,16)}")
    KP, RC = OB, OB + 12
    L1 = a.new_label("Lx"); L2 = a.new_label("Lx")
    a(f"s_cmp_eq_u32 s62, 0\ns_cbranch_scc1 {L1}")
    def xch(give, gz, keep, kz):
        a(f"ds_write_b32 v{vXZ}, v{gz} offset:2048\nv_mov_b32 v{KP+8}, v{kz}\ns_nop 7")
        a(f"ds_write_b128 v{vXW}, {v(give,4)}\nds_write_b128 v{vXW}, {v(give+4,4)} offset:1024")
        for q in range(8): a(f"v_mov_b32 v{KP+q}, v{keep+q}")
    xch(KVD, ZD, KVD + 24, ZD + 16)
    a(f"s_branch {L2}")
    a.label(L1)
    xch(KVD + 24, ZD + 16, KVD, ZD)
    a.label(L2)
    a.wait(vm="wq", lg="all"); a("s_barrier")
    a.dsop(f"ds_read_b128 {v(RC,4)}, v{vXR}", "x"); a.dsop(f"ds_read_b128 {v(RC+4,4)}, v{vXR} offset:1024", "x")
    a.dsop(f"ds_read_b32 v{RC+8}, v{vXRZ} offset:2048", "x")
    a.wait(lg="all")
    for q in range(4): a(f"v_pk_add_f32 {v(KP+2*q,2)}, {v(KP+2*q,2)}, {v(RC+2*q,2)}")
    a(f"v_add_f32 v{KP+8}, v{KP+8}, v{RC+8}")
    a.vmop(f"buffer_store_dwordx4 {v(KP,4)}, v26, s[64:67], s54 offen sc1", "pub")
    a.vmop(f"buffer_store_dwordx4 {v(KP+4,4)}, v26, s[64:67], s54 offen offset:1024 sc1", "pub")
    a.vmop(f"buffer_store_dword v{KP+8}, v27, s[64:67], s54 offen offset:2048 sc1", "pub")
    a.stamp(4)
    items = [f"s_lshl_b32 s52, s50, 2\ns_add_u32 s52, s52, {KV_FLAG}\nv_mov_b32 v2, s52"]
    items += ["s_nop 0"] * 0
    wo = []
    for i in range(16):
        wo.append(('vm', f"s_add_u32 s56, s45, {i}\ns_and_b32 s56, s56, 15\ns_lshl_b32 s57, s56, 12\ns_add_u32 s57, s57, s44\n"
                   f"s_add_u32 m0, s57, {WV_L}\ns_lshl_b32 s56, s56, 15\ns_add_u32 s56, s56, s91\n"
                   f"buffer_load_dwordx4 v25, s[92:95], s56 offen lds", "wo"))
    items += [('skip', 16)] * 14 + [('wait', "pub", None), ('vm', flag_store(vTAG, 2, 64, 0), "fl"), xcc_load(vXF, vFL, 3)]
    fill = Filler(items, wo)
    wpass(WQ_L, (0,), KQ, False, fill, {}, 16)
    fill.flush(a, dma=False)
    items = phi_items(KQ, (0,)) + softmax_items([(PB + 16 * u, OB + 8 * u) for u in (0, 1)], TM, pk=False)
    fill.items = items
    wpass(WQ_L, (1,), KQ, False, fill, {}, 17)
    fill.flush(a)
    for it in phi_items(KQ, (1,)): a.emit(it)
    a.stamp(5)
    a(f"s_mov_b32 s52, {KV_FLAG}")
    poll_flags(a, vFL, 64, "s52", 4)
    a.stamp(6)
    def gx(r):
        if r < 12: return 64 + 8 * r
        if r < 14: return 224 + 8 * (r - 12)
        return 10 + 8 * (r - 14)
    GZ = 36
    for r in range(16):
        a(f"s_mov_b32 s52, {r*KV_RB}")
        a.vmop(f"buffer_load_dwordx4 {v(gx(r),4)}, v26, s[64:67], s52 offen sc1", ("g", r))
        a.vmop(f"buffer_load_dwordx4 {v(gx(r)+4,4)}, v26, s[64:67], s52 offen offset:1024 sc1", ("g", r))
        a.vmop(f"buffer_load_dword v{GZ+r}, v27, s[64:67], s52 offen offset:2048 sc1", ("g", r))
    for it in softmax_items([(PB + 16 * u, OB + 8 * u) for u in (2, 3)], TM): a.emit(it)
    SM = 64
    for r in range(1, 16):
        a.wait(vm=("g", r))
        for q in range(4): a(f"v_pk_add_f32 {v(SM+2*q,2)}, {v(SM+2*q,2)}, {v(gx(r)+2*q,2)}")
        a(f"v_add_f32 v{GZ}, v{GZ}, v{GZ+r}")
    a.stamp(7)
    for q in range(4): a(f"v_cvt_pk_bf16_f32 v{72+q}, v{SM+2*q}, v{SM+2*q+1}")
    for q in range(4): a(f"v_cvt_pk_bf16_f32 v{76+q}, v{GZ}, v{GZ}")
    a(f"v_xor_b32 v2, 32, v{vKW}\nv_xor_b32 v3, 32, v{vKR}")
    a.dsop(f"ds_write_b128 v{vKW}, v[72:75]", "kw"); a.dsop("ds_write_b128 v2, v[76:79]", "kw")
    a.wait(lg="all"); a("s_barrier")
    KA = 80
    for h in range(2):
        for i2 in range(2):
            a.dsop(f"ds_read_b64_tr_b16 {v(KA+8*h+4*i2,2)}, v{vKR} offset:{16384*h + 512*i2}", "ka")
            a.dsop(f"ds_read_b64_tr_b16 {v(KA+8*h+4*i2+2,2)}, v3 offset:{16384*h + 512*i2 + 256}", "ka")
    a(f"""
    s_lshl_b32 s52, s50, 2
    s_lshl_b32 s53, s62, 1
    s_add_u32 s52, s52, s53
    s_lshl_b32 s52, s52, 5
    s_add_u32 s52, s52, s48
    s_lshl_b32 s52, s52, 10
    s_add_u32 s52, s52, {O_OFF}
    s_add_u32 s53, s52, 32768
    s_lshl_b32 s56, s50, 1
    s_add_u32 s56, s56, s62
    s_lshl_b32 s56, s56, 7
    s_add_u32 s56, s56, {FL_OFF + 4096}
    s_lshl_b32 s57, s84, 1
    s_add_u32 s57, s57, s62
    s_lshl_b32 s57, s57, 7
    s_add_u32 s57, s57, {FL_OFF + 4096}
    s_lshl_b32 s58, s48, 1
    v_mov_b32 v2, s58
    """)
    a.wait(lg="all")
    OD = 96
    for u in range(4):
        h = u & 1
        for i2 in range(2):
            a(f"{MF} {v(OD+16*u,16)}, {v(KA+8*h+4*i2,4)}, {v(OB+8*u+4*i2,4)}, {'0' if i2 == 0 else v(OD+16*u,16)}")
    def ostores(sfx):
        for u in range(4):
            d = OD + 16 * u
            a(f"v_add_f32 v{d+8}, 0x358637bd, v{d+8}\nv_rcp_f32 v{d+8}, v{d+8}")
            for q in range(4): a(f"v_pk_mul_f32 {v(d+2*q,2)}, {v(d+2*q,2)}, {v(d+8,2)} op_sel:[0,0] op_sel_hi:[1,0]")
            for q in range(4): a(f"v_cvt_pk_bf16_f32 v{d+12+q}, v{d+2*q}, v{d+2*q+1}")
            a.vmop(f"buffer_store_dwordx4 {v(d+12,4)}, v26, s[36:39], s{52 + (u>>1)} offen offset:{1024*(u&1)}{sfx}", "o")
    def between():
        a.stamp(8)
        a(f"s_lshl_b32 s58, s63, 6\nv_xor_b32 v7, s58, v{vWI}\nv_add_u32 v7, {WV_L}, v7\nv_xor_b32 v8, 64, v7")
    assert opt['bmap'] == 2 or not opt['fast']
    dual_store(a, vXF, ostores, "o", between, flag_store(vTAG, 2, 36, "s56"))
    a.stamp(9)
    poll_flags(a, vFL, 36, "s57", 4)
    a.stamp(10)
    def oload(ks):
        if ks % 4 == 0: a(f"s_add_u32 s57, s90, {ks*1024}" if not opt['rot2'] else f"s_lshl_b32 s57, s85, 12\ns_xor_b32 s57, s57, {ks*1024}\ns_add_u32 s57, s57, s90")
        a.vmop(f"buffer_load_dwordx4 {ar(4*ks,4)}, v26, s[36:39], s57 offen offset:{(ks%4)*1024}{['', ' sc1', ' sc0', ' nt'][opt['hld']]}", ("h", ks))
    for ks in range(opt['npre']): oload(ks)
    ACC = 64; FR2 = 96; D2 = 2
    def reads2(ks):
        f = FR2 + 8 * (ks % (D2 + 1))
        for n in range(2):
            for ab in range(2):
                a.dsop(f"ds_read_b64_tr_b16 {v(f+4*n+2*ab,2)}, v{7+n} offset:{ks*2048 + ab*512}", ("rd", ks))
    for ks in range(D2): reads2(ks)
    for ks in range(32):
        if ks + D2 < 32: reads2(ks + D2)
        if ks + opt['npre'] < 32: oload(ks + opt['npre'])
        a.wait(vm=("h", ks), lg=("rd", ks))
        f = FR2 + 8 * (ks % (D2 + 1))
        for n in range(2):
            a(f"{MF} {v(ACC+16*n,16)}, {ar(4*ks,4)}, {v(f+4*n,4)}, {'0' if ks == 0 else v(ACC+16*n,16)}")
    a.stamp(11)
    OUT = 128
    for r in range(16):
        o = OUT + 2 * r
        a(f"v_cvt_pk_bf16_f32 v{o+1}, v{ACC+r}, v{ACC+16+r}")
        a(f"v_lshlrev_b32 v{o}, 16, v{o+1}\nv_and_b32 v{o+1}, 0xffff0000, v{o+1}")
        a(f"s_mov_b32 s58, {(8*(r>>2) + (r&3))*4096}")
        a.vmop(f"buffer_store_dword v{o}, v{vOO}, s[40:43], s58 offen", "out")
        a.vmop(f"buffer_store_dword v{o+1}, v{vOO}, s[40:43], s58 offen offset:128", "out")
    tag_finish(a, 1, lambda L: f"s_add_u32 s48, s2, s20\ns_cmp_lg_u32 s48, 1\ns_cbranch_scc1 {L}")
    a.stamp(12)
    a.stamp_out(13)

KN = NAME + "_kernel"
a = G()
a.raw("; @launch grid=(256,1,1) block=(256,1,1) lds=163840")
a.raw(HEAD)
a.raw(kstart(KN))
a.stamp(0)
a(f"""
s_cmp_ge_u32 s2, 256
s_cbranch_scc1 L_end
v_lshrrev_b32 v2, 6, v0
v_and_b32 v1, 63, v0
s_bitcmp1_b32 s2, 0
v_readfirstlane_b32 s20, v2
s_cbranch_scc1 L_roleB
""")
role_A(a)
a.label("L_end")
a("s_endpgm")
a.label("L_roleB")
role_B(a)
a("s_endpgm")
a.raw(kd(KN, 512, 256))
lines = []
for l in a.lines: lines += l.split("\n")
lines = hazard.fix(lines, verbose=True)
open(sys.argv[1], "w").write("\n".join(lines) + "\n")
```

```python
import sys
from asmlib import *
import hazard

opt = dict(stamp=0, D=2, bmap=2, clk=0, pre=2, spin=0x40000, fast=1, pace=77, cst=0, noc=0, nomfma=0, noread=0, hld=1, rot2=0, rpace=64, touch=0, npre=12, dbg=0)
for x in sys.argv[2:]:
    k, v_ = x.split("="); opt[k] = int(v_)

H_OFF = 0
O_OFF = 4 << 20
E_OFF = 6 << 20
KV_OFF = (6 << 20) + (128 << 10)
KV_RB = 2304
KV_FLAG = 16 * KV_RB
KV_HEAD = KV_FLAG + 128
FL_OFF = 8 << 20
TAG_OFF = (8 << 20) + 65536
XF_OFF = (8 << 20) + 32768
STAMP_OFF = 64 << 20
LOG2E = 0x3fb8aa3b
INV2PI = 0x3e22f983
MF = "v_mfma_f32_32x32x16_bf16"

def v(i, n=1):
    return f"v{i}" if n == 1 else f"v[{i}:{i+n-1}]"
def ar(i, n=1):
    return f"a{i}" if n == 1 else f"a[{i}:{i+n-1}]"

class G(Asm):
    def __init__(self):
        super().__init__()
        self.vm = []; self.lg = []
    def reset(self):
        self.vm = []; self.lg = []
    def vmop(self, s, tag):
        if len(self.vm) >= 61:
            self("s_waitcnt vmcnt(60)"); del self.vm[:len(self.vm) - 60]
        self(s); self.vm.append(tag)
    def dsop(self, s, tag):
        self(s); self.lg.append(tag)
    def _cnt(self, lst, tag, mx):
        if tag not in lst: return None
        idx = max(i for i, t in enumerate(lst) if t == tag)
        n = min(len(lst) - 1 - idx, mx)
        del lst[:len(lst) - n]
        return n
    def wait(self, vm=None, lg=None):
        parts = []
        if vm is not None:
            if vm == "all": self.vm.clear(); parts.append("vmcnt(0)")
            else:
                n = self._cnt(self.vm, vm, 63)
                if n is not None: parts.append(f"vmcnt({n})")
        if lg is not None:
            if lg == "all": self.lg.clear(); parts.append("lgkmcnt(0)")
            else:
                n = self._cnt(self.lg, lg, 15)
                if n is not None: parts.append(f"lgkmcnt({n})")
        if parts: self("s_waitcnt " + " ".join(parts))
    def srd(self, b, lo, nbytes):
        self(f"s_mov_b32 s{b}, s{lo}\ns_mov_b32 s{b+1}, s{lo+1}\ns_mov_b32 s{b+2}, {nbytes}\ns_mov_b32 s{b+3}, 0x20000")
    def srd_off(self, b, lo, off, nbytes):
        self(f"s_add_u32 s{b}, s{lo}, {off}\ns_addc_u32 s{b+1}, s{lo+1}, 0\ns_mov_b32 s{b+2}, {nbytes}\ns_mov_b32 s{b+3}, 0x20000")
    def stamp(self, i):
        if opt['stamp']:
            self(f"{'s_memtime' if opt['clk'] else 's_memrealtime'} s[100:101]\ns_waitcnt lgkmcnt(0)\ns_mov_b32 s{70+i}, s100"); self.lg.clear()
    def stamp_out(self, n):
        if opt['dbg']:
            L = self.new_label("Lso")
            sel = [1, 2, 4, 5, 7, 8, 9] if n == 10 else [1, 2, 3, 4, 5, 7, 10, 11, 12]
            base = 0 if n == 10 else 28
            self(f"s_lshr_b32 s52, s2, 1\ns_add_u32 s52, s52, s20\ns_cmp_lg_u32 s52, {opt['dbg']-1}\ns_cbranch_scc1 {L}\ns_cmp_lg_u32 s20, 0\ns_cbranch_scc1 {L}")
            self("s_load_dwordx2 s[52:53], s[0:1], 112\ns_waitcnt lgkmcnt(0)\nv_mov_b32 v2, 0")
            for k_, i in enumerate(sel):
                self(f"s_sub_u32 s56, s{70+i}, s70\nv_mov_b32 v3, s56\nglobal_store_dword v2, v3, s[52:53] offset:{base+4*k_}")
            self.label(L)
        elif opt['stamp']:
            L = self.new_label("Lso")
            self(f"s_cmp_lg_u32 s20, 0\ns_cbranch_scc1 {L}")
            self(f"s_lshl_b32 s52, s2, 7\ns_add_u32 s52, s52, {STAMP_OFF}\nv_mov_b32 v2, s52")
            for i in range(n):
                self(f"v_mov_b32 v3, s{70+i}\nbuffer_store_dword v3, v2, s[36:39], 0 offen offset:{4*i}")
            if opt['cst']:
                for c in range(1, 8):
                    self(f"v_mov_b32 v3, s{2+2*c}\nbuffer_store_dword v3, v2, s[36:39], 0 offen offset:{64+4*c}")
            self.label(L)
    def emit(self, it):
        if isinstance(it, str): self(it)
        elif it[0] == 'ds': self.dsop(it[1], it[2])
        elif it[0] == 'vm': self.vmop(it[1], it[2])
        elif it[0] == 'wait': self.wait(vm=it[1], lg=it[2])
def cost(it):
    if isinstance(it, str):
        c = 0
        for l in it.split("\n"):
            l = l.strip()
            if l.startswith(hazard.TRANS): c += 8
            elif l.startswith("v_mfma"): c += 8
            elif l.startswith("s_nop"): c += 4 * (int(l.split()[1]) + 1)
            elif l.startswith("s_"): c += 3
            elif l.startswith(("v_mul_f32", "v_add_f32", "v_max_f32", "v_mov", "v_xor", "v_and", "v_lshl", "v_sub")): c += 4
            else: c += 4.6
        return c
    if it[0] == 'vm': return 8 + 3 * it[1].count("\n")
    if it[0] == 'skip': return it[1]
    return 4
class Filler:
    def __init__(self, items, dma=()):
        self.items = list(items); self.credit = 0; self.dma = list(dma); self.dcredit = 0
    def run(self, a, budget, elapsed=32):
        self.credit += budget; self.dcredit += elapsed
        while self.dma and isinstance(self.dma[0], str):
            it = self.dma.pop(0); self.credit -= cost(it); a.emit(it)
        if self.dma:
            pace = opt['rpace'] if self.dma[0][2][0] == "ch" else opt['pace']
            if self.dcredit >= pace:
                it = self.dma.pop(0); self.dcredit -= pace; self.credit -= cost(it); a.emit(it)
        if not self.dma: self.dcredit = 0
        while self.items and self.credit >= cost(self.items[0]) * 0.5:
            it = self.items.pop(0); self.credit -= cost(it); a.emit(it)
            if isinstance(it, str) and it.startswith("v_mfma"): self.credit += budget + 8; self.dcredit += elapsed
        if not self.items: self.credit = 0
    def flush(self, a, dma=True):
        for it in self.items: a.emit(it)
        self.items = []
        if dma:
            for it in self.dma: a.emit(it)
            self.dma = []

def tilemap(a, kind, rb, col, rot):
    a("s_lshr_b32 s21, s2, 1\ns_and_b32 s21, s21, 3\ns_lshr_b32 s22, s2, 3")
    if kind == 2:
        a(f"""
        s_lshl_b32 s{rb}, s21, 2
        s_and_b32 s52, s22, 3
        s_add_u32 s{rb}, s{rb}, s52
        s_lshr_b32 s{col}, s22, 2
        s_lshl_b32 s{rot}, s52, 1
        s_add_u32 s{rot}, s{rot}, s{col}
        s_and_b32 s{rot}, s{rot}, 7
        """)
    else:
        a(f"""
        s_and_b32 s{rb}, s21, 1
        s_lshl_b32 s{rb}, s{rb}, 3
        s_and_b32 s52, s22, 7
        s_add_u32 s{rb}, s{rb}, s52
        s_lshr_b32 s{col}, s21, 1
        s_lshl_b32 s{col}, s{col}, 2
        s_lshr_b32 s53, s22, 3
        s_add_u32 s{col}, s{col}, s53
        s_lshl_b32 s{rot}, s53, 1
        s_add_u32 s{rot}, s{rot}, s52
        s_and_b32 s{rot}, s{rot}, 7
        """)

def dma_items(c, ldsbase, pieces, tag, wreg=58):
    kinds = {p[2] for p in pieces}
    pre = f"s_add_u32 s56, s55, {c}\ns_and_b32 s56, s56, 7"
    if 'x' in kinds: pre += "\ns_lshl_b32 s57, s56, 7"
    if 'w' in kinds: pre += f"\ns_mul_i32 s{wreg}, s56, {64*3072}"
    out = [pre]
    for (vr, sr, kind, ls, li) in pieces:
        out.append(('vm', f"s_add_u32 m0, s{ls}, {ldsbase + li}\n"
                    f"buffer_load_dwordx4 v{vr}, s[{sr}:{sr+3}], s{57 if kind == 'x' else wreg} offen lds", tag))
    return out

def ring_loop(a, S, stage, pieces, addr_regs, reads, mfmas, early, mid, extra_at, slot_budget, elapsed, endbar=False):
    D = opt['D']
    pre = min(opt['pre'], S)
    for c in range(pre):
        for it in dma_items(c, (c % S) * stage, pieces, ("ch", c)): a.emit(it)
    mid()
    fill = Filler([])
    for c in range(pre, S):
        fill.dma += dma_items(c, (c % S) * stage, pieces, ("ch", c))
    if opt['pre'] >= 9: fill.flush(a)
    a.wait(vm=("ch", 0), lg="all"); a("s_barrier")
    a.stamp(1)
    issued = S
    def need(c):
        while any((not isinstance(it, str)) and it[2] == ("ch", c) for it in fill.dma):
            a.emit(fill.dma.pop(0))
    for n in range(D): reads(n)
    for n in range(32):
        m = n + D
        if m < 32:
            if m % 4 == 0:
                c = m // 4
                need(c)
                e = early(c)
                a.wait(vm=("ch", c), lg=("all" if e else None)); a("s_barrier")
                if opt['cst']: a(f"s_memtime s[{2+2*c}:{3+2*c}]")
                delta = stage if (c % S) != 0 else -(S - 1) * stage
                for r in addr_regs:
                    a(f"v_add_u32 v{r}, {delta}, v{r}" if delta > 0 else f"v_subrev_u32 v{r}, {-delta}, v{r}")
                free_upto = c - (1 if e else 2)
                while issued < 8 and issued - S <= free_upto:
                    fill.dma += dma_items(issued, (issued % S) * stage, pieces, ("ch", issued)); issued += 1
                fill.dma += extra_at.get(c, [])
            if not opt['noread']: reads(m)
        a.wait(lg=("rd", n))
        if endbar and n == 31: a("s_barrier")
        for q in mfmas(n):
            if not opt['nomfma'] or n == 0: a(q)
            fill.run(a, slot_budget, elapsed)
    return fill

def cmul(d, x, y):
    return (f"v_mul_f32 v{d}, v{x}, v{y}\nv_mul_f32 v{d+1}, v{x}, v{y+1}\n"
            f"v_fma_f32 v{d}, -v{x+1}, v{y+1}, v{d}\nv_fma_f32 v{d+1}, v{x+1}, v{y}, v{d+1}")
def cfma(d, x, y, z):
    return (f"v_pk_fma_f32 {v(d,2)}, {v(x,2)}, {v(y,2)}, {v(z,2)} op_sel:[0,0,0] op_sel_hi:[0,1,1]\n"
            f"v_pk_fma_f32 {v(d,2)}, {v(x,2)}, {v(y,2)}, {v(d,2)} op_sel:[1,1,0] op_sel_hi:[1,0,1] neg_lo:[1,0,0]")
def pkb(d, s, sel, x, z, neg=False):
    n = " neg_lo:[1,0,0] neg_hi:[1,0,0]" if neg else ""
    return f"v_pk_fma_f32 {v(d,2)}, {v(s,2)}, {v(x,2)}, {v(z,2)} op_sel:[{sel},0,0] op_sel_hi:[{sel},1,1]{n}"

def poll_flags(a, voff, srd, soff, tmp):
    L = a.new_label("Lpf"); LD = a.new_label("Lpfd")
    a(f"s_mov_b32 s59, {opt['spin']}")
    a.label(L)
    a(f"buffer_load_dword v{tmp}, v{voff}, s[{srd}:{srd+3}], {soff} offen sc1\ns_waitcnt vmcnt(0)")
    a.vm.clear()
    a(f"v_cmp_ne_u32 vcc, s3, v{tmp}")
    a(f"s_cbranch_vccz {LD}\ns_sub_u32 s59, s59, 1\ns_cmp_eq_u32 s59, 0\ns_cbranch_scc1 {LD}\ns_sleep 1\ns_branch {L}")
    a.label(LD)
def flag_store(vtag, voff, srd, soff):
    return f"s_mov_b64 exec, 1\nbuffer_store_dword v{vtag}, v{voff}, s[{srd}:{srd+3}], {soff} offen sc1\ns_mov_b64 exec, -1"

def xcc_publish(a, role, vtmp):
    L = a.new_label("Lxp")
    a(f"""
    s_getreg_b32 s23, hwreg(HW_REG_XCC_ID)
    s_and_b32 s23, s23, 7
    s_lshl_b32 s52, s3, 3
    s_or_b32 s23, s23, s52
    s_lshl_b32 s87, s50, 7
    s_add_u32 s87, s87, {XF_OFF + 2048*role}
    s_cmp_lg_u32 s20, 0
    s_cbranch_scc1 {L}
    s_lshl_b32 s52, s51, 2
    v_mov_b32 v{vtmp}, s52
    v_mov_b32 v{vtmp+1}, s23
    """)
    a(flag_store(vtmp + 1, vtmp, 36, "s87"))
    a.label(L)
def xcc_load(vdst, vfl, vtmp):
    return ('vm', f"v_and_b32 v{vtmp}, 28, v{vfl}\nbuffer_load_dword v{vdst}, v{vtmp}, s[36:39], s87 offen sc1", "xf")
def dual_store(a, vxf, stores, tag, between, flag):
    LS = a.new_label("Lslow"); LE = a.new_label("Lsend")
    vm0, lg0 = list(a.vm), list(a.lg)
    variants = [" sc1"]
    if opt['fast']:
        a(f"v_cmp_ne_u32 vcc, s23, v{vxf}\ns_cbranch_vccnz {LS}")
        variants = ["", " sc1"]
    for k_, sfx in enumerate(variants):
        a.vm[:] = vm0; a.lg[:] = lg0
        stores(sfx)
        between()
        a.wait(vm=tag)
        a.vmop(flag.replace(" sc1", sfx), "fl")
        if len(variants) == 2 and k_ == 0:
            a(f"s_branch {LE}"); a.label(LS); a("s_nop 7\ns_nop 3")
    a.label(LE)

def tag_finish(a, role, cond):
    L = a.new_label("Ltag")
    a(cond(L))
    a(f"v_mov_b32 v2, {TAG_OFF + 128*role}\nv_mov_b32 v3, s3")
    a(flag_store(3, 2, 36, 0))
    a.label(L)

def role_A(a):
    a.reset()
    S, stage = 5, 32768
    a("""
    s_load_dwordx2 s[4:5], s[0:1], 0
    s_load_dwordx4 s[8:11], s[0:1], 24
    s_load_dwordx2 s[46:47], s[0:1], 120
    s_load_dwordx4 s[12:15], s[0:1], 8
    s_load_dwordx4 s[16:19], s[0:1], 56
    s_load_dwordx4 s[84:87], s[0:1], 40
    s_load_dwordx2 s[88:89], s[0:1], 104
    """)
    tilemap(a, 2, 50, 51, 55)
    XA, BA = 16, 20
    ACC = 64; FR = 128
    LAM, C2, L16, L32, MU, MU8, WA, WB = 24, 26, 28, 30, 32, 34, 36, 38
    T = 44
    EX = 176
    AD = 184
    a("""
    v_lshrrev_b32 v2, 5, v1
    v_lshlrev_b32 v2, 5, v2
    v_bfe_u32 v3, v1, 3, 1
    v_lshl_add_u32 v2, v3, 4, v2
    v_bfe_u32 v3, v1, 4, 1
    v_add_u32 v2, v2, v3
    v_lshlrev_b32 v2, 10, v2
    v_and_b32 v3, 7, v1
    v_lshrrev_b32 v4, 4, v1
    v_xor_b32 v3, v3, v4
    v_lshlrev_b32 v3, 4, v3
    s_lshr_b32 s52, s20, 1
    s_lshl_b32 s52, s52, 6
    s_and_b32 s53, s20, 1
    s_lshl_b32 s53, s53, 3
    s_add_u32 s52, s52, s53
    s_lshl_b32 s53, s50, 7
    s_add_u32 s52, s52, s53
    s_lshl_b32 s52, s52, 10
    v_add3_u32 v10, v2, v3, s52
    v_xor_b32 v11, 64, v10
    v_add_u32 v11, 2048, v11
    v_add_u32 v12, 4096, v10
    v_add_u32 v13, 4096, v11
    v_lshrrev_b32 v2, 3, v1
    v_lshlrev_b32 v2, 10, v2
    s_lshl_b32 s52, s51, 6
    s_lshl_b32 s53, s20, 4
    s_add_u32 s52, s52, s53
    s_lshl_b32 s52, s52, 10
    v_add3_u32 v14, v2, v3, s52
    v_xor_b32 v15, 64, v14
    v_add_u32 v15, 8192, v15
    s_lshl_b32 s60, s20, 12
    s_lshl_b32 s61, s20, 11
    v_and_b32 v9, 31, v1
    s_and_b32 s63, s20, 1
    s_lshl_b32 s63, s63, 5
    s_lshl_b32 s52, s51, 6
    s_add_u32 s52, s52, s63
    v_add_u32 v5, s52, v9
    v_lshlrev_b32 v5, 1, v5
    s_waitcnt lgkmcnt(0)
    """)
    a(f"s_add_u32 s52, s46, {TAG_OFF}\ns_addc_u32 s53, s47, 0\ns_load_dword s3, s[52:53], 0")
    a.vmop(f"global_load_ushort v{T}, v5, s[12:13]", "par")
    a.vmop(f"global_load_ushort v{T+1}, v5, s[14:15]", "par")
    a.vmop(f"global_load_ushort v{T+2}, v5, s[16:17]", "par")
    a.srd(24, 4, 2097152); a.srd(28, 8, 524288); a.srd(32, 10, 524288)
    pieces = [(10 + i, 24, 'x', 60, i * 1024) for i in range(4)] + \
             [(14 + i, 28, 'x', 61, 16384 + i * 1024) for i in range(2)] + \
             [(14 + i, 32, 'x', 61, 16384 + 8192 + i * 1024) for i in range(2)]
    SCR = 65536
    CS = [98304, 131072, 0, 32768]
    vEW, vER, vEG, vTW, vTR, vL16, vFL, vXO, vOO, vDO, vTAG, vPF, vXF, DS = range(AD, AD + 14)
    XR = 208; OUT = 224
    CR = 200
    def mid():
        a.srd(36, 46, 268435456); a.srd(40, 88, 8388608); a.srd(92, 84, 524288); a.srd(96, 86, 524288)
        a(f"s_lshl_b32 s48, s51, 14\ns_add_u32 s48, s48, {E_OFF}")
        a.srd_off(64, 46, "s48", 16384)
        a(f"""
        v_lshrrev_b32 v8, 5, v1
        v_bfe_u32 v4, v1, 1, 3
        v_xor_b32 v3, v8, v4
        v_lshlrev_b32 v3, 4, v3
        v_lshl_add_u32 v3, v9, 7, v3
        s_lshr_b32 s62, s20, 1
        s_lshl_b32 s48, s62, 13
        s_lshl_b32 s49, s63, 7
        s_add_u32 s49, s49, 16384
        """)
        for ks in range(4):
            a(f"v_xor_b32 v4, {32*ks}, v3\nv_add_u32 v{XA+ks}, s48, v4\nv_add_u32 v{BA+ks}, s49, v4")
        a(f"""
        v_add_u32 v2, s63, v9
        v_lshlrev_b32 v3, 3, v2
        v_add_u32 v{vER}, {SCR}, v3
        v_lshlrev_b32 v4, 9, v8
        s_lshl_b32 s48, s62, 10
        v_add3_u32 v{vEW}, v4, v{vER}, s48
        s_sub_u32 s54, 15, s50
        s_lshl_b32 s54, s54, 10
        v_lshlrev_b32 v{vEG}, 4, v2
        v_lshlrev_b32 v{vL16}, 4, v1
        v_and_b32 v{vFL}, 15, v1
        v_lshlrev_b32 v{vFL}, 2, v{vFL}
        """)
        a(f"""
        s_lshl_b32 s48, s20, 13
        s_add_u32 s48, s48, {SCR}
        v_lshlrev_b32 v3, 2, v8
        v_and_b32 v4, 7, v1
        v_xor_b32 v3, v3, v4
        v_lshlrev_b32 v3, 4, v3
        v_lshl_add_u32 v3, v9, 7, v3
        v_add_u32 v{vTW}, s48, v3
        v_bfe_u32 v4, v1, 2, 2
        v_lshl_add_u32 v3, v8, 3, v4
        v_lshlrev_b32 v3, 7, v3
        v_bfe_u32 v5, v1, 4, 1
        v_lshlrev_b32 v5, 1, v5
        v_bfe_u32 v6, v1, 1, 1
        v_add_u32 v5, v5, v6
        v_xor_b32 v5, v5, v4
        v_lshl_add_u32 v3, v5, 4, v3
        v_and_b32 v6, 1, v1
        v_lshl_add_u32 v3, v6, 3, v3
        v_add_u32 v{vTR}, s48, v3
        """)
        a(f"""
        s_lshl_b32 s48, s50, 2
        s_add_u32 s48, s48, s20
        s_lshl_b32 s90, s48, 16
        s_add_u32 s90, s90, {H_OFF}
        s_lshl_b32 s48, s48, 5
        v_lshl_add_u32 v2, v8, 2, s48
        s_lshl_b32 s49, s51, 7
        v_lshl_add_u32 v{vDO}, v9, 2, s49
        v_lshl_add_u32 v{vXO}, v2, 10, v{vDO}
        v_lshlrev_b32 v3, 1, v{vDO}
        v_lshl_add_u32 v{vOO}, v2, 12, v3
        v_and_b32 v3, 15, v1
        v_xor_b32 v3, v3, v8
        v_lshlrev_b32 v3, 4, v3
        v_lshl_add_u32 v3, v9, 10, v3
        """)
        for q in range(8): a(f"v_xor_b32 v{CR+q}, {32*q}, v3")
        a(f"""
        s_lshl_b32 s91, s51, 6
        s_lshl_b32 s48, s20, 4
        s_add_u32 s91, s91, s48
        s_lshl_b32 s91, s91, 10
        s_lshl_b32 s44, s20, 13
        s_and_b32 s45, s20, 1
        s_lshl_b32 s45, s45, 7
        v_lshlrev_b32 v{vPF}, 7, v1
        s_lshl_b32 s48, s51, 6
        s_and_b32 s49, s50, 3
        s_lshl_b32 s49, s49, 4
        s_add_u32 s48, s48, s49
        s_lshl_b32 s48, s48, 10
        s_lshl_b32 s49, s45, 6
        s_add_u32 s48, s48, s49
        v_add_u32 v{vPF}, s48, v{vPF}
        """)
        a.wait(vm="par")
        Lr, Li, dt = T, T + 1, T + 2
        a(f"""
        v_lshlrev_b32 v{Lr}, 16, v{Lr}
        v_lshlrev_b32 v{Li}, 16, v{Li}
        v_lshlrev_b32 v{dt}, 16, v{dt}
        v_mul_f32 v{dt}, {LOG2E}, v{dt}
        v_exp_f32 v{dt}, v{dt}
        v_cvt_pk_bf16_f32 v{dt}, v{dt}, v{dt}
        v_lshlrev_b32 v{dt}, 16, v{dt}
        v_mul_f32 v{T+3}, v{dt}, v{Lr}
        v_mul_f32 v{T+4}, v{dt}, v{Li}
        v_mul_f32 v{T+3}, {LOG2E}, v{T+3}
        v_exp_f32 v{T+3}, v{T+3}
        v_mul_f32 v{T+4}, {INV2PI}, v{T+4}
        v_rndne_f32 v{T+5}, v{T+4}
        v_sub_f32 v{T+4}, v{T+4}, v{T+5}
        v_cos_f32 v{T+5}, v{T+4}
        v_sin_f32 v{T+6}, v{T+4}
        v_mul_f32 v{LAM}, v{T+3}, v{T+5}
        v_mul_f32 v{LAM+1}, v{T+3}, v{T+6}
        v_mul_f32 v{T+3}, v{Lr}, v{Lr}
        v_fma_f32 v{T+3}, v{Li}, v{Li}, v{T+3}
        v_rcp_f32 v{T+3}, v{T+3}
        v_add_f32 v{T+4}, -1.0, v{LAM}
        v_mul_f32 v{T+5}, v{T+4}, v{Lr}
        v_fma_f32 v{T+5}, v{LAM+1}, v{Li}, v{T+5}
        v_mul_f32 v{T+6}, v{LAM+1}, v{Lr}
        v_fma_f32 v{T+6}, -v{T+4}, v{Li}, v{T+6}
        v_add_f32 v{T+3}, v{T+3}, v{T+3}
        v_mul_f32 v{C2}, v{T+5}, v{T+3}
        v_mul_f32 v{C2+1}, v{T+6}, v{T+3}
        """)
        a(cmul(T, LAM, LAM)); a(cmul(T + 2, T, T)); a(cmul(T, T + 2, T + 2)); a(cmul(L16, T, T))
        a(cmul(L32, L16, L16)); a(cmul(T + 4, L32, L32))
        a(cmul(MU, T + 4, T + 4))
        a(cmul(T, MU, MU)); a(cmul(T + 2, T, T)); a(cmul(MU8, T + 2, T + 2))
        a(f"""
        v_cmp_lt_u32 vcc, 31, v1
        v_cndmask_b32 v{T}, 1.0, v{L32}, vcc
        v_cndmask_b32 v{T+1}, 0, v{L32+1}, vcc
        v_cmp_lt_u32 vcc, 127, v0
        v_cndmask_b32 v{T+2}, 1.0, v{T+4}, vcc
        v_cndmask_b32 v{T+3}, 0, v{T+5}, vcc
        """)
        a(cmul(T + 6, T, T + 2)); a(cmul(T, T + 6, C2)); a(cmul(T + 2, T, L16))
        a(f"v_mov_b32 v{WA}, v{T}\nv_mov_b32 v{WA+1}, v{T+2}\nv_mov_b32 v{WB}, v{T+1}\nv_mov_b32 v{WB+1}, v{T+3}")
        a(f"s_waitcnt lgkmcnt(0)\ns_add_u32 s3, s3, 1\ns_max_u32 s3, s3, 1\nv_mov_b32 v{vTAG}, s3\nv_lshlrev_b32 v2, 3, v8")
        for jj in range(8):
            a(f"v_add_u32 v3, {jj+1}, v2\nv_cmp_ge_u32 vcc, s50, v3\nv_cndmask_b32 v{EX+jj}, 0, v{vTAG}, vcc")
        xcc_publish(a, 0, 2)
    D = opt['D']
    def reads(n):
        f = FR + 16 * (n % (D + 1)); ks = n % 4
        a.dsop(f"ds_read_b128 {v(f,4)}, v{XA+ks}", ("rd", n))
        a.dsop(f"ds_read_b128 {v(f+8,4)}, v{BA+ks}", ("rd", n))
        a.dsop(f"ds_read_b128 {v(f+12,4)}, v{BA+ks} offset:8192", ("rd", n))
        a.dsop(f"ds_read_b128 {v(f+4,4)}, v{XA+ks} offset:4096", ("rd", n))
    def mfmas(n):
        f = FR + 16 * (n % (D + 1))
        out = []
        for i in range(2):
            for part in range(2):
                d = ACC + 32 * part + 16 * i
                out.append(f"{MF} {v(d,16)}, {v(f+4*i,4)}, {v(f+8+4*part,4)}, {'0' if n == 0 else v(d,16)}")
        return out
    def cgroup(g):
        part, n = g >> 1, g & 1
        out = []
        for i in range(8):
            out.append(('vm', f"s_add_u32 s48, s45, {16*i}\nv_xor_b32 v{2+(i&1)}, s48, v{vL16}\n"
                        f"s_add_u32 m0, s44, {CS[g] + i*1024}\ns_add_u32 s49, s91, {i*2048 + n*1024}\n"
                        f"buffer_load_dwordx4 v{2+(i&1)}, s[{92+4*part}:{95+4*part}], s49 offen lds", ("c", g)))
        return out
    LPF = a.new_label("Lcpf"); LPF2 = a.new_label("Lcpf")
    cpf = [('vm', f"s_cmp_ge_u32 s20, 2\ns_cbranch_scc1 {LPF}\nbuffer_load_dword v4, v{vPF}, s[92:95], 0 offen\ns_branch {LPF2}\n{LPF}:\n"
                  f"buffer_load_dword v4, v{vPF}, s[96:99], 0 offen\n{LPF2}:", "pf")]
    xl = [('vm', f"global_load_dword v{DS}, v{vDO}, s[18:19]", "x")]
    for r4 in range(4):
        for r in range(4 * r4, 4 * r4 + 4):
            xl.append(('vm', f"s_mov_b32 s49, {r4*8192}\nbuffer_load_dword v{XR+r}, v{vXO}, s[24:27], s49 offen offset:{(r&3)*1024}", "x"))
    extra = {4: cpf, 5: cgroup(0), 6: cgroup(1), 7: cgroup(2) + cgroup(3)}
    if opt['noc']: extra = {}
    if opt['touch']:
        tch = [('vm', f"""s_lshl_b32 s48, s50, 2
        s_and_b32 s49, s20, 2
        s_add_u32 s48, s48, s49
        s_lshl_b32 s48, s48, 6
        s_lshl_b32 s49, s51, 2
        s_add_u32 s48, s48, s49
        s_and_b32 s49, s20, 1
        s_lshl_b32 s49, s49, 1
        s_add_u32 s48, s48, s49
        s_lshl_b32 s48, s48, 10
        s_add_u32 s48, s48, {H_OFF}
        v_and_b32 v2, 15, v1
        v_lshlrev_b32 v2, 7, v2
        v_lshrrev_b32 v3, 4, v1
        v_lshl_add_u32 v2, v3, 15, v2
        buffer_load_dword v5, v2, s[36:39], s48 offen sc1""", "tch")]
        extra[4] = extra.get(4, []) + tch
    fill = ring_loop(a, S, stage, pieces, list(range(XA, XA + 8)), reads, mfmas, lambda c: c == 7, mid, extra, 20, 36, endbar=True)
    fill.flush(a, dma=False)
    a.stamp(2)
    RE, IM = ACC, ACC + 32
    cur_r, cur_i = RE, IM
    for st in range(1, 16):
        nr = T + 4 * (st & 1); ni = nr + 2
        a(pkb(ni, LAM, 1, cur_r, IM + 2 * st))
        a(pkb(nr, LAM, 1, cur_i, RE + 2 * st, neg=True))
        a(pkb(nr, LAM, 0, cur_r, nr))
        a(pkb(ni, LAM, 0, cur_i, ni))
        cur_r, cur_i = nr, ni
    EA, EE = T + 8, T + 10
    a(f"v_mov_b32 v{EA}, v{cur_r}\nv_mov_b32 v{EA+1}, v{cur_i}\nv_mov_b32 v{EE}, v{cur_r+1}\nv_mov_b32 v{EE+1}, v{cur_i+1}")
    a(cfma(EE, L16, EA, EE))
    a.dsop(f"ds_write_b64 v{vEW}, {v(EE,2)}", "e")
    a.wait(lg="all"); a("s_barrier")
    F = FR
    for b in range(4):
        a.dsop(f"ds_read_b64 {v(F+2*b,2)}, v{vER} offset:{512*b}", "e")
    a(f"v_mov_b32 v{F+13}, s3\nv_mov_b32 v{F+15}, s3")
    a.wait(lg="all")
    a(cfma(F + 2, L32, F, F + 2)); a(cfma(F + 4, L32, F + 2, F + 4)); a(cfma(F + 6, L32, F + 4, F + 6))
    L = a.new_label("Lpub")
    a(f"v_mov_b32 v{F+12}, v{F+6}\nv_mov_b32 v{F+14}, v{F+7}")
    a(f"s_cmp_ge_u32 s20, 2\ns_cbranch_scc1 {L}\ns_mov_b32 exec_hi, 0")
    a(f"buffer_store_dwordx4 {v(F+12,4)}, v{vEG}, s[64:67], s54 offen sc1\ns_mov_b64 exec, -1")
    a.label(L)
    a.stamp(3)
    fill.flush(a)
    a.emit(xcc_load(vXF, vFL, 2))
    for it in xl: a.emit(it)
    a("s_barrier")
    a(f"""
    v_cmp_lt_u32 vcc, 31, v1
    v_cndmask_b32 v{F+8}, 0, v{F}, vcc
    v_cndmask_b32 v{F+9}, 0, v{F+1}, vcc
    v_cndmask_b32 v{F+10}, v{F+2}, v{F+4}, vcc
    v_cndmask_b32 v{F+11}, v{F+3}, v{F+5}, vcc
    v_cmp_lt_u32 vcc, 127, v0
    v_cndmask_b32 v{F+8}, v{F+8}, v{F+10}, vcc
    v_cndmask_b32 v{F+9}, v{F+9}, v{F+11}, vcc
    """)
    a(cfma(EA, L16, F + 8, EA))
    a(cmul(F + 10, C2, F + 8)); a(cmul(F + 16, C2, EA))
    PR, PI = T + 12, T + 14
    a(f"v_mov_b32 v{PR}, v{F+10}\nv_mov_b32 v{PR+1}, v{F+16}\nv_mov_b32 v{PI}, v{F+11}\nv_mov_b32 v{PI+1}, v{F+17}")
    for st in range(16):
        r_, i_ = RE + 2 * st, IM + 2 * st
        t = T + 2 * (st & 1)
        a(f"v_pk_mul_f32 {v(t,2)}, {v(C2,2)}, {v(r_,2)} op_sel:[1,0] op_sel_hi:[1,1]")
        a(f"v_pk_mul_f32 {v(r_,2)}, {v(C2,2)}, {v(r_,2)} op_sel:[0,0] op_sel_hi:[0,1]")
        a(pkb(r_, C2, 1, i_, r_, neg=True))
        a(pkb(i_, C2, 0, i_, t))
    a(f"v_lshlrev_b32 v4, 13, v8\nv_add3_u32 v4, v4, v{vEG}, s54\nv_add_u32 v4, 1024, v4\nv_add_u32 v5, 4096, v4")
    LP = a.new_label("Lpoll"); LD = a.new_label("Lpolld")
    a(f"s_mov_b32 s59, {opt['spin']}")
    a.label(LP)
    for jj in range(7, -1, -1):
        a(f"buffer_load_dwordx4 {v(F+4*jj,4)}, v{4+(jj>>2)}, s[64:67], 0 offen offset:{1024*(jj&3)} sc1")
    a("s_waitcnt vmcnt(0)"); a.vm.clear()
    a(f"v_xor_b32 v6, v{F+1}, v{EX}\nv_xor_b32 v7, v{F+3}, v{EX}")
    for jj in range(1, 8):
        a(f"v_bitop3_b32 v6, v{F+4*jj+1}, v{EX+jj}, v6 bitop3:0xbe\nv_bitop3_b32 v7, v{F+4*jj+3}, v{EX+jj}, v7 bitop3:0xbe")
    a("v_or_b32 v6, v6, v7\nv_cmp_ne_u32 vcc, 0, v6")
    a(f"s_cbranch_vccz {LD}\ns_sub_u32 s59, s59, 1\ns_cmp_eq_u32 s59, 0\ns_cbranch_scc1 {LD}\ns_branch {LP}")
    a.label(LD)
    a.stamp(4)
    for jj in range(6, -1, -1):
        d, s_ = F + 4 * jj, F + 4 * jj + 4
        a(f"v_fma_f32 v{d}, v{MU}, v{s_}, v{d}\nv_fma_f32 v{d+2}, v{MU}, v{s_+2}, v{d+2}")
        a(f"v_fma_f32 v{d}, -v{MU+1}, v{s_+2}, v{d}\nv_fma_f32 v{d+2}, v{MU+1}, v{s_}, v{d+2}")
    a(f"v_mov_b32 v{F+1}, v{F+2}\nv_mov_b32 v{F+3}, v{F+2}\nv_mov_b32 v{F+2}, v{F}")
    a(f"v_permlane32_swap_b32 v{F}, v{F+2}\nv_permlane32_swap_b32 v{F+1}, v{F+3}")
    a(cfma(F, MU8, F + 2, F))
    a(pkb(PR, F, 0, WA, PR)); a(pkb(PI, F, 0, WB, PI)); a(pkb(PR, F, 1, WB, PR, neg=True)); a(pkb(PI, F, 1, WA, PI))
    cur_r, cur_i = PR, PI
    def twrite(i):
        for part in range(2):
            ng = "-" if part else ""
            for ch in range(2):
                base = ACC + 32 * part + 16 * i + ch
                d = F + 16 * i + 8 * part + 4 * ch
                for q in range(4):
                    a(f"v_cvt_pk_bf16_f32 v{d+q}, {ng}v{base+4*q}, {ng}v{base+4*q+2}")
                a(f"v_xor_b32 v{6+ch}, {(2*ch+i)*16}, v{vTW}")
                a.dsop(f"ds_write_b128 v{6+ch}, {v(d,4)} offset:{part*4096}", "tw")
    for st in range(16):
        r_, i_ = RE + 2 * st, IM + 2 * st
        a(pkb(i_, LAM, 1, cur_r, i_))
        a(pkb(r_, LAM, 1, cur_i, r_, neg=True))
        a(pkb(r_, LAM, 0, cur_r, r_))
        a(pkb(i_, LAM, 0, cur_i, i_))
        cur_r, cur_i = r_, i_
        if st == 7: twrite(0)
    twrite(1)
    a(f"""
    s_lshl_b32 s52, s50, 2
    s_and_b32 s53, s20, 2
    s_add_u32 s52, s52, s53
    s_lshl_b32 s52, s52, 6
    s_lshl_b32 s53, s51, 2
    s_add_u32 s52, s52, s53
    s_and_b32 s53, s20, 1
    s_lshl_b32 s53, s53, 1
    s_add_u32 s52, s52, s53
    s_lshl_b32 s52, s52, 10
    s_add_u32 s52, s52, {H_OFF}
    v_xor_b32 v6, 64, v{vTR}
    """)
    a.wait(lg="all")
    G0 = ACC
    k = 0; frs = []
    for Tt in range(2):
        for part in range(2):
            for pg in range(2):
                d = G0 + 4 * k
                for ab in range(2):
                    ad = vTR if (Tt ^ ab) == 0 else 6
                    a.dsop(f"ds_read_b64_tr_b16 {v(d+2*ab,2)}, v{ad} offset:{(part*32 + 16*pg + 4*ab)*128}", ("tr", k))
                frs.append((k, d, Tt, part, pg)); k += 1
    a(f"""
    s_lshl_b32 s48, s50, 1
    s_add_u32 s48, s48, s62
    s_lshl_b32 s48, s48, 7
    s_add_u32 s48, s48, {FL_OFF}
    s_lshl_b32 s49, s51, 3
    s_lshr_b32 s53, s63, 3
    s_add_u32 s49, s49, s53
    v_mov_b32 v2, s49
    """)
    def hstores(sfx):
        for k, d, Tt, part, pg in frs:
            a(f"s_add_u32 s53, s52, {(Tt*64 + part*32)*1024}")
            a.wait(lg=("tr", k))
            a.vmop(f"buffer_store_dwordx4 {v(d,4)}, v{vL16}, s[36:39], s53 offen offset:{pg*1024}{sfx}", "h")
    def between():
        a.stamp(5)
        a("s_barrier")
    dual_store(a, vXF, hstores, "h", between, flag_store(vTAG, 2, 36, "s48"))
    a.stamp(6)
    poll_flags(a, vFL, 36, "s48", 4)
    a.stamp(7)
    def hload(ks):
        s = f"s_add_u32 s57, s90, {ks*1024}\n" if ks % 4 == 0 else ""
        if opt['rot2'] and s: s = f"s_lshl_b32 s57, s51, 13\ns_xor_b32 s57, s57, {ks*1024}\ns_add_u32 s57, s57, s90\n"
        return ('vm', s + f"buffer_load_dwordx4 {ar(4*ks,4)}, v{vL16}, s[36:39], s57 offen offset:{(ks%4)*1024}{['', ' sc1', ' sc0', ' nt'][opt['hld']]}", ("h", ks))
    NPRE = opt['npre']
    for ks in range(NPRE): a.emit(hload(ks))
    rest = [hload(ks) for ks in range(NPRE, 64)]
    a(f"v_lshlrev_b32 v28, 16, v{DS}\nv_and_b32 v29, 0xffff0000, v{DS}")
    sk = []
    for r in range(16):
        o = OUT + 2 * r
        sk += [f"v_lshlrev_b32 v{o}, 16, v{XR+r}", f"v_and_b32 v{o+1}, 0xffff0000, v{XR+r}",
               f"v_mul_f32 v{o}, v{o}, v28", f"v_mul_f32 v{o+1}, v{o+1}, v29",
               f"v_cvt_pk_bf16_f32 v{o+1}, v{o}, v{o+1}",
               f"v_lshlrev_b32 v{o}, 16, v{o+1}", f"v_and_b32 v{o+1}, 0xffff0000, v{o+1}"]
    skf = Filler(sk)
    FR2 = 96; D2 = 3
    for q in range(8): a(f"v_add_u32 v{CR+q}, {CS[0]}, v{CR+q}")
    def reads2(ks):
        f = FR2 + 8 * (ks % (D2 + 1)); pg = ks & 31
        if ks == 32:
            for q in range(8): a(f"v_subrev_u32 v{CR+q}, {CS[0]}, v{CR+q}")
        o = (pg >> 3) * 256
        a.dsop(f"ds_read_b128 {v(f,4)}, v{CR+(pg&7)} offset:{o}", ("rd", ks))
        a.dsop(f"ds_read_b128 {v(f+4,4)}, v{CR+(pg&7)} offset:{o + 32768}", ("rd", ks))
    for ks in range(D2): reads2(ks)
    for ks in range(64):
        if ks + D2 < 64: reads2(ks + D2)
        if rest: a.emit(rest.pop(0))
        a.wait(vm=("h", ks), lg=("rd", ks))
        f = FR2 + 8 * (ks % (D2 + 1))
        for n in range(2):
            a(f"{MF} {v(ACC+16*n,16)}, {ar(4*ks,4)}, {v(f+4*n,4)}, {'0' if ks == 0 else v(ACC+16*n,16)}")
            skf.run(a, 9)
    skf.flush(a)
    a.stamp(8)
    for r in range(16):
        o = OUT + 2 * r
        a(f"v_add_f32 v{o}, v{o}, v{ACC+r}\nv_add_f32 v{o+1}, v{o+1}, v{ACC+16+r}")
        a(f"s_mov_b32 s58, {(8*(r>>2) + (r&3))*4096}")
        a.vmop(f"buffer_store_dwordx2 {v(o,2)}, v{vOO}, s[40:43], s58 offen", "out")
    tag_finish(a, 0, lambda L: f"s_lshl_b32 s48, s50, 5\ns_add_u32 s48, s48, s51\ns_add_u32 s48, s48, s20\ns_cmp_lg_u32 s48, {15*32}\ns_cbranch_scc1 {L}")
    a.stamp(9)
    a.stamp_out(10)

def softmax_items(units, tmp, pk=True):
    seqs = []
    for u, (P, O) in enumerate(units):
        t = tmp + 4 * u
        s = []
        s.append(f"v_max3_f32 v{t}, v{P}, v{P+1}, v{P+2}")
        s.append(f"v_max3_f32 v{t+1}, v{P+3}, v{P+4}, v{P+5}")
        s.append(f"v_max3_f32 v{t}, v{t}, v{P+6}, v{P+7}")
        s.append(f"v_max3_f32 v{t+1}, v{t+1}, v{P+8}, v{P+9}")
        s.append(f"v_max3_f32 v{t}, v{t}, v{P+10}, v{P+11}")
        s.append(f"v_max3_f32 v{t+1}, v{t+1}, v{P+12}, v{P+13}")
        s.append(f"v_max3_f32 v{t}, v{t}, v{P+14}, v{P+15}")
        s.append(f"v_max_f32 v{t}, v{t}, v{t+1}")
        s.append(f"v_mul_f32 v{t}, s69, v{t}")
        if pk:
            for q in range(8):
                s.append(f"v_pk_fma_f32 {v(P+2*q,2)}, {v(P+2*q,2)}, s[68:69], {v(t,2)} op_sel:[0,0,0] op_sel_hi:[1,0,0]")
            for q in range(16):
                s.append(f"v_exp_f32 v{P+q}, v{P+q}")
            s.append(f"v_pk_add_f32 {v(t,2)}, {v(P,2)}, {v(P+2,2)}")
            s.append(f"v_pk_add_f32 {v(t+2,2)}, {v(P+4,2)}, {v(P+6,2)}")
            s.append(f"v_pk_add_f32 {v(t,2)}, {v(t,2)}, {v(P+8,2)}")
            s.append(f"v_pk_add_f32 {v(t+2,2)}, {v(t+2,2)}, {v(P+10,2)}")
            s.append(f"v_pk_add_f32 {v(t,2)}, {v(t,2)}, {v(P+12,2)}")
            s.append(f"v_pk_add_f32 {v(t+2,2)}, {v(t+2,2)}, {v(P+14,2)}")
            s.append(f"v_pk_add_f32 {v(t,2)}, {v(t,2)}, {v(t+2,2)}")
            s.append(f"v_add_f32 v{t}, v{t}, v{t+1}")
            s.append(f"v_rcp_f32 v{t}, v{t}")
            for q in range(8):
                s.append(f"v_pk_mul_f32 {v(P+2*q,2)}, {v(P+2*q,2)}, {v(t,2)} op_sel:[0,0] op_sel_hi:[1,0]")
        else:
            for q in range(16):
                s.append(f"v_fma_f32 v{P+q}, v{P+q}, s68, v{t}")
                s.append(f"v_exp_f32 v{P+q}, v{P+q}")
                if q == 3: s.append(f"v_add_f32 v{t+1}, v{P}, v{P+1}")
                if q == 5: s.append(f"v_add_f32 v{t+2}, v{P+2}, v{P+3}")
                if q >= 6: s.append(f"v_add_f32 v{t+1+(q&1)}, v{t+1+(q&1)}, v{P+q-2}")
            s.append(f"v_add_f32 v{t+1}, v{t+1}, v{P+14}")
            s.append(f"v_add_f32 v{t+2}, v{t+2}, v{P+15}")
            s.append(f"v_add_f32 v{t}, v{t+1}, v{t+2}")
            s.append(f"v_rcp_f32 v{t}, v{t}")
            for q in range(16):
                s.append(f"v_mul_f32 v{P+q}, v{t}, v{P+q}")
        for q in range(8):
            s.append(f"v_cvt_pk_bf16_f32 v{O+q}, v{P+2*q}, v{P+2*q+1}")
        seqs.append(s)
    out = []
    for i in range(len(seqs[0])):
        for s in seqs: out.append(s[i])
    return out

def role_B(a):
    a.reset()
    S, stage = 4, 24576
    WV_L = 98304
    WQ_L = 0
    SC_L = 65536
    a("""
    s_load_dwordx4 s[4:7], s[0:1], 72
    s_load_dwordx2 s[46:47], s[0:1], 120
    s_load_dwordx4 s[8:11], s[0:1], 88
    s_load_dwordx2 s[88:89], s[0:1], 104
    """)
    tilemap(a, opt['bmap'], 50, 51, 55)
    XA, WAD = 20, 24
    WP = 28
    a("""
    v_lshrrev_b32 v2, 3, v1
    v_and_b32 v3, 7, v1
    v_lshrrev_b32 v4, 4, v1
    v_xor_b32 v5, v3, v4
    v_lshlrev_b32 v5, 4, v5
    v_lshl_add_u32 v5, v2, 10, v5
    s_lshl_b32 s52, s50, 7
    s_lshl_b32 s53, s20, 5
    s_add_u32 s52, s52, s53
    s_lshl_b32 s52, s52, 10
    v_add_u32 v10, s52, v5
    v_xor_b32 v11, 64, v10
    v_add_u32 v11, 8192, v11
    v_add_u32 v12, 16384, v10
    v_add_u32 v13, 16384, v11
    v_and_b32 v4, 1, v4
    v_lshlrev_b32 v4, 2, v4
    v_xor_b32 v4, v3, v4
    v_lshlrev_b32 v4, 4, v4
    v_mul_u32_u24 v5, 3072, v2
    s_lshl_b32 s52, s51, 7
    s_mul_i32 s53, s20, 49152
    s_add_u32 s52, s52, s53
    v_add3_u32 v14, v4, v5, s52
    v_add_u32 v16, 1024, v14
    v_add_u32 v17, 25600, v14
    s_lshl_b32 s60, s20, 12
    s_lshl_b32 s61, s20, 11
    v_lshl_add_u32 v25, v2, 10, v4
    s_waitcnt lgkmcnt(0)
    """)
    a(f"s_add_u32 s52, s46, {TAG_OFF + 128}\ns_addc_u32 s53, s47, 0\ns_load_dword s3, s[52:53], 0")
    a.srd(24, 4, 2097152); a.srd(28, 6, 1572864)
    pieces = [(10 + i, 24, 'x', 60, i * 1024) for i in range(4)] + [(16 + i, 28, 'w', 61, 16384 + i * 1024) for i in range(2)]
    def wimg(c, base, vr, tag):
        return dma_items(c, base + c * 8192, [(vr + i, 28, 'w', 61, i * 1024) for i in range(2)], tag, wreg=96)
    KQ, V, PB, OB, WF = 64, 96, 128, 192, 224
    CV, TM = 36, 52
    vPW0, vPW1, vPR, vWI = 60, 61, 62, 63
    vKW, vKR, vXW, vXZ, vXR, vXRZ, vFL, vTAG, vOO, vXF = range(240, 250)
    vONE = 252
    def mid():
        a(f"""
        v_add_u32 v15, 24576, v14
        v_add_u32 v18, 2048, v14
        v_add_u32 v19, 2048, v15
        v_and_b32 v9, 31, v1
        v_lshrrev_b32 v8, 5, v1
        s_and_b32 s63, s20, 1
        s_lshr_b32 s62, s20, 1
        s_lshl_b32 s48, s51, 2
        s_lshl_b32 s52, s63, 1
        s_add_u32 s48, s48, s52
        s_add_u32 s49, s48, s62
        v_lshrrev_b32 v2, 3, v9
        v_and_b32 v3, 3, v9
        v_lshl_add_u32 v2, v2, 2, v3
        v_lshlrev_b32 v2, 1, v2
        v_lshl_add_u32 v2, v8, 7, v2
        s_lshl_b32 s52, s48, 9
        v_add_u32 v2, s52, v2
        """)
        for h in range(2):
            for j in range(8):
                d = 8 * (j >> 2) + (j & 3)
                a.vmop(f"global_load_ushort v{36+8*h+j}, v2, s[8:9] offset:{h*512 + d*32}", "wp")
        a.srd(36, 46, 268435456); a.srd(40, 88, 8388608); a.srd(92, 10, 524288)
        a(f"s_mul_i32 s52, s49, {KV_HEAD}\ns_add_u32 s52, s52, {KV_OFF}\ns_mul_i32 s54, s50, {KV_RB}")
        a.srd_off(64, 46, "s52", KV_HEAD)
        a(f"""
        v_lshlrev_b32 v26, 4, v1
        v_lshlrev_b32 v27, 2, v1
        s_mov_b32 s68, {LOG2E}
        s_mov_b32 s69, {LOG2E | 0x80000000}
        v_bfe_u32 v4, v1, 1, 3
        v_xor_b32 v4, v8, v4
        v_lshlrev_b32 v4, 4, v4
        v_lshl_add_u32 v4, v9, 7, v4
        s_lshl_b32 s52, s62, 13
        """)
        for ks in range(4):
            a(f"v_xor_b32 v5, {32*ks}, v4\nv_add_u32 v{XA+ks}, s52, v5")
        a(f"""
        v_bfe_u32 v4, v1, 2, 2
        v_lshl_add_u32 v5, v8, 3, v4
        v_lshlrev_b32 v5, 7, v5
        v_lshrrev_b32 v6, 1, v4
        v_xor_b32 v6, s63, v6
        v_lshl_add_u32 v5, v6, 6, v5
        v_bfe_u32 v6, v1, 4, 1
        v_lshl_add_u32 v5, v6, 5, v5
        v_and_b32 v3, 3, v1
        v_lshl_add_u32 v{vWI}, v3, 3, v5
        v_add_u32 v{WAD}, 16384, v{vWI}
        v_lshlrev_b32 v7, 1, v6
        v_bfe_u32 v2, v1, 1, 1
        v_add_u32 v7, v7, v2
        s_lshl_b32 s52, s20, 13
        s_add_u32 s52, s52, {SC_L}
        v_lshlrev_b32 v3, 1, v8
        v_bfe_u32 v5, v1, 1, 2
        v_xor_b32 v6, v3, v5
        v_lshlrev_b32 v6, 4, v6
        v_lshl_add_u32 v6, v9, 6, v6
        v_add_u32 v{vPW0}, s52, v6
        v_xor_b32 v{vPW1}, 16, v{vPW0}
        v_lshl_add_u32 v6, v8, 2, v4
        v_lshrrev_b32 v2, 1, v6
        v_xor_b32 v2, v2, v7
        v_lshlrev_b32 v2, 4, v2
        v_lshl_add_u32 v2, v6, 6, v2
        v_and_b32 v3, 1, v1
        v_lshl_add_u32 v2, v3, 3, v2
        v_add_u32 v{vPR}, s52, v2
        v_add_u32 v{vXW}, s52, v26
        v_add_u32 v{vXZ}, s52, v27
        v_xor_b32 v{vXR}, 16384, v{vXW}
        v_xor_b32 v{vXRZ}, 16384, v{vXZ}
        """)
        a(f"""
        v_xor_b32 v6, v8, v5
        v_lshlrev_b32 v6, 4, v6
        v_lshl_add_u32 v6, v9, 6, v6
        s_add_u32 s53, s52, 4096
        v_add_u32 v{vKW}, s53, v6
        v_lshl_add_u32 v6, v8, 4, v4
        v_lshlrev_b32 v6, 6, v6
        v_lshrrev_b32 v2, 1, v4
        v_xor_b32 v2, v2, v7
        v_lshl_add_u32 v6, v2, 4, v6
        v_lshl_add_u32 v6, v3, 3, v6
        s_lshl_b32 s53, s63, 13
        s_add_u32 s53, s53, {SC_L + 4096}
        v_add_u32 v{vKR}, s53, v6
        v_and_b32 v{vFL}, 15, v1
        v_lshlrev_b32 v{vFL}, 2, v{vFL}
        """)
        for q in range(4): a(f"v_mov_b32 v{vONE+q}, 0x3f803f80")
        tilemap(a, 2, 84, 85, 86)
        a(f"""
        s_lshl_b32 s52, s84, 2
        s_add_u32 s52, s52, s20
        s_lshl_b32 s90, s52, 15
        s_add_u32 s90, s90, {O_OFF}
        s_lshl_b32 s52, s52, 5
        v_lshl_add_u32 v2, v8, 2, s52
        s_lshl_b32 s53, s85, 8
        s_add_u32 s53, s53, 2048
        v_lshl_add_u32 v3, v9, 2, s53
        v_lshl_add_u32 v{vOO}, v2, 12, v3
        s_lshl_b32 s91, s85, 7
        s_lshl_b32 s52, s20, 13
        s_add_u32 s91, s91, s52
        s_lshl_b32 s44, s20, 10
        s_and_b32 s45, s84, 3
        s_lshl_b32 s45, s45, 2
        s_waitcnt lgkmcnt(0)
        s_add_u32 s3, s3, 1
        s_max_u32 s3, s3, 1
        v_mov_b32 v{vTAG}, s3
        """)
        xcc_publish(a, 1, 2)
    D = opt['D']
    def reads(n):
        ks = n % 4; f = WF + 4 * (n % (D + 1))
        a.dsop(f"ds_read_b128 {ar(8*n,4)}, v{XA+ks}", ("rd", n))
        for ab in range(2):
            a.dsop(f"ds_read_b64_tr_b16 {v(f+2*ab,2)}, v{WAD} offset:{ks*2048 + ab*512}", ("rd", n))
        a.dsop(f"ds_read_b128 {ar(8*n+4,4)}, v{XA+ks} offset:4096", ("rd", n))
    def mfmas(n):
        f = WF + 4 * (n % (D + 1))
        return [f"{MF} {v(KQ+16*i,16)}, {v(f,4)}, {ar(8*n+4*i,4)}, {'0' if n == 0 else v(KQ+16*i,16)}" for i in range(2)]
    wv = []
    for c in range(8): wv += wimg(c, WV_L, 18, ("wv", c >> 1))
    extra = {4: wv}
    if opt['touch']:
        extra[4] = wv + [('vm', f"""s_lshl_b32 s52, s50, 2
        s_lshl_b32 s53, s62, 1
        s_add_u32 s52, s52, s53
        s_lshl_b32 s52, s52, 5
        s_add_u32 s52, s52, s48
        s_lshl_b32 s52, s52, 10
        s_add_u32 s52, s52, {O_OFF}
        v_and_b32 v2, 15, v1
        v_lshlrev_b32 v2, 7, v2
        v_bfe_u32 v3, v1, 4, 1
        v_lshl_add_u32 v2, v3, 15, v2
        buffer_load_dword v5, v2, s[36:39], s52 offen sc1""", "tch")]
    fill = ring_loop(a, S, stage, pieces, list(range(XA, XA + 5)), reads, mfmas, lambda c: True, mid, extra, 40, 56)
    fill.flush(a)
    a.stamp(2)
    DW = 3
    def wpass(base, tiles, acc, xfirst, fill, bars, budget):
        a(f"v_add_u32 v{WAD}, {base}, v{vWI}")
        key = (base, tuple(tiles))
        def rd(n):
            if n in bars:
                bars[n]()
            f = WF + 4 * (n % (DW + 1))
            for ab in range(2):
                a.dsop(f"ds_read_b64_tr_b16 {v(f+2*ab,2)}, v{WAD} offset:{n*2048 + ab*512}", ("rw", key, n))
        for n in range(DW): rd(n)
        for n in range(32):
            if n + DW < 32: rd(n + DW)
            a.wait(lg=("rw", key, n))
            f = WF + 4 * (n % (DW + 1))
            for i in tiles:
                x, w = ar(8 * n + 4 * i, 4), v(f, 4)
                A_, B_ = (x, w) if xfirst else (w, x)
                a(f"{MF} {v(acc+16*i,16)}, {A_}, {B_}, {'0' if n == 0 else v(acc+16*i,16)}")
                fill.run(a, budget)
    def phi_items(src, tiles):
        out = []
        for i in tiles:
            for h in range(2):
                u = 2 * i + h
                for q in range(4):
                    out.append(f"v_cvt_pk_bf16_f32 v{CV+4*u+q}, v{src+16*i+8*h+2*q}, v{src+16*i+8*h+2*q+1}")
        for i in tiles:
            for h in range(2):
                u = 2 * i + h
                out.append(f"{MF} {v(PB+16*u,16)}, {v(WP+4*h,4)}, {v(CV+4*u,4)}, 0")
        return out
    a.wait(vm="wp")
    a("v_bfe_u32 v2, v1, 2, 1\nv_mul_u32_u24 v2, 0x8000, v2\nv_lshl_or_b32 v2, v2, 16, v2")
    for r in range(8):
        a(f"v_lshl_or_b32 v{WP+r}, v{36+2*r+1}, 16, v{36+2*r}\nv_xor_b32 v{WP+r}, v2, v{WP+r}")
    items = phi_items(KQ, (0, 1))
    wq = []
    for c in range(8): wq += wimg(c, WQ_L, 14, "wq")
    PF = KQ
    ZD = PB + 32
    for pr in range(2):
        items += softmax_items([(PB + 16 * u, OB + 8 * u) for u in (2 * pr, 2 * pr + 1)], TM, pk=False)
        for u in (2 * pr, 2 * pr + 1):
            items.append(('ds', f"ds_write_b128 v{vPW0}, {v(OB+8*u,4)} offset:{2048*u}", ("pw", pr)))
            items.append(('ds', f"ds_write_b128 v{vPW1}, {v(OB+8*u+4,4)} offset:{2048*u}", ("pw", pr)))
        for u in (2 * pr, 2 * pr + 1):
            for i2 in range(2):
                for ab in range(2):
                    items.append(('ds', f"ds_read_b64_tr_b16 {v(PF+8*u+4*i2+2*ab,2)}, v{vPR} offset:{2048*u + (16*i2+8*ab)*64}", ("pf", u)))
    for u in range(4):
        i, h = u >> 1, u & 1
        items.append(('wait', None, ("pf", u)))
        for i2 in range(2):
            first = (i == 0 and i2 == 0)
            items.append(f"{MF} {v(ZD+16*h,16)}, {v(vONE,4)}, {v(PF+8*u+4*i2,4)}, {'0' if first else v(ZD+16*h,16)}")
    fill = Filler(items, wq)
    def wvbar(q):
        def f():
            a.wait(vm=("wv", q), lg=("all" if q == 0 else None)); a("s_barrier")
        return f
    wpass(WV_L, (0, 1), V, True, fill, {8 * q: wvbar(q) for q in range(4)}, 21)
    fill.flush(a)
    a.stamp(3)
    for i in range(2):
        for q in range(8):
            a(f"v_cvt_pk_bf16_f32 v{V+16*i+q}, v{V+16*i+2*q}, v{V+16*i+2*q+1}")
    KVD = PB
    for u in range(4):
        i, h = u >> 1, u & 1
        for i2 in range(2):
            first = (i == 0 and i2 == 0)
            a(f"{MF} {v(KVD+16*h,16)}, {v(V+16*i+4*i2,4)}, {v(PF+8*u+4*i2,4)}, {'0' if first else v(KVD+16*h,16)}")
    KP, RC = OB, OB + 12
    L1 = a.new_label("Lx"); L2 = a.new_label("Lx")
    a(f"s_cmp_eq_u32 s62, 0\ns_cbranch_scc1 {L1}")
    def xch(give, gz, keep, kz):
        a(f"ds_write_b32 v{vXZ}, v{gz} offset:2048\nv_mov_b32 v{KP+8}, v{kz}\ns_nop 7")
        a(f"ds_write_b128 v{vXW}, {v(give,4)}\nds_write_b128 v{vXW}, {v(give+4,4)} offset:1024")
        for q in range(8): a(f"v_mov_b32 v{KP+q}, v{keep+q}")
    xch(KVD, ZD, KVD + 24, ZD + 16)
    a(f"s_branch {L2}")
    a.label(L1)
    xch(KVD + 24, ZD + 16, KVD, ZD)
    a.label(L2)
    a.wait(vm="wq", lg="all"); a("s_barrier")
    a.dsop(f"ds_read_b128 {v(RC,4)}, v{vXR}", "x"); a.dsop(f"ds_read_b128 {v(RC+4,4)}, v{vXR} offset:1024", "x")
    a.dsop(f"ds_read_b32 v{RC+8}, v{vXRZ} offset:2048", "x")
    a.wait(lg="all")
    for q in range(4): a(f"v_pk_add_f32 {v(KP+2*q,2)}, {v(KP+2*q,2)}, {v(RC+2*q,2)}")
    a(f"v_add_f32 v{KP+8}, v{KP+8}, v{RC+8}")
    a.vmop(f"buffer_store_dwordx4 {v(KP,4)}, v26, s[64:67], s54 offen sc1", "pub")
    a.vmop(f"buffer_store_dwordx4 {v(KP+4,4)}, v26, s[64:67], s54 offen offset:1024 sc1", "pub")
    a.vmop(f"buffer_store_dword v{KP+8}, v27, s[64:67], s54 offen offset:2048 sc1", "pub")
    a.stamp(4)
    items = [f"s_lshl_b32 s52, s50, 2\ns_add_u32 s52, s52, {KV_FLAG}\nv_mov_b32 v2, s52"]
    items += ["s_nop 0"] * 0
    wo = []
    for i in range(16):
        wo.append(('vm', f"s_add_u32 s56, s45, {i}\ns_and_b32 s56, s56, 15\ns_lshl_b32 s57, s56, 12\ns_add_u32 s57, s57, s44\n"
                   f"s_add_u32 m0, s57, {WV_L}\ns_lshl_b32 s56, s56, 15\ns_add_u32 s56, s56, s91\n"
                   f"buffer_load_dwordx4 v25, s[92:95], s56 offen lds", "wo"))
    items += [('skip', 16)] * 14 + [('wait', "pub", None), ('vm', flag_store(vTAG, 2, 64, 0), "fl"), xcc_load(vXF, vFL, 3)]
    fill = Filler(items, wo)
    wpass(WQ_L, (0,), KQ, False, fill, {}, 16)
    fill.flush(a, dma=False)
    items = phi_items(KQ, (0,)) + softmax_items([(PB + 16 * u, OB + 8 * u) for u in (0, 1)], TM, pk=False)
    fill.items = items
    wpass(WQ_L, (1,), KQ, False, fill, {}, 17)
    fill.flush(a)
    for it in phi_items(KQ, (1,)): a.emit(it)
    a.stamp(5)
    a(f"s_mov_b32 s52, {KV_FLAG}")
    poll_flags(a, vFL, 64, "s52", 4)
    a.stamp(6)
    def gx(r):
        if r < 12: return 64 + 8 * r
        if r < 14: return 224 + 8 * (r - 12)
        return 10 + 8 * (r - 14)
    GZ = 36
    for r in range(16):
        a(f"s_mov_b32 s52, {r*KV_RB}")
        a.vmop(f"buffer_load_dwordx4 {v(gx(r),4)}, v26, s[64:67], s52 offen sc1", ("g", r))
        a.vmop(f"buffer_load_dwordx4 {v(gx(r)+4,4)}, v26, s[64:67], s52 offen offset:1024 sc1", ("g", r))
        a.vmop(f"buffer_load_dword v{GZ+r}, v27, s[64:67], s52 offen offset:2048 sc1", ("g", r))
    for it in softmax_items([(PB + 16 * u, OB + 8 * u) for u in (2, 3)], TM): a.emit(it)
    SM = 64
    for r in range(1, 16):
        a.wait(vm=("g", r))
        for q in range(4): a(f"v_pk_add_f32 {v(SM+2*q,2)}, {v(SM+2*q,2)}, {v(gx(r)+2*q,2)}")
        a(f"v_add_f32 v{GZ}, v{GZ}, v{GZ+r}")
    a.stamp(7)
    for q in range(4): a(f"v_cvt_pk_bf16_f32 v{72+q}, v{SM+2*q}, v{SM+2*q+1}")
    for q in range(4): a(f"v_cvt_pk_bf16_f32 v{76+q}, v{GZ}, v{GZ}")
    a(f"v_xor_b32 v2, 32, v{vKW}\nv_xor_b32 v3, 32, v{vKR}")
    a.dsop(f"ds_write_b128 v{vKW}, v[72:75]", "kw"); a.dsop("ds_write_b128 v2, v[76:79]", "kw")
    a.wait(lg="all"); a("s_barrier")
    KA = 80
    for h in range(2):
        for i2 in range(2):
            a.dsop(f"ds_read_b64_tr_b16 {v(KA+8*h+4*i2,2)}, v{vKR} offset:{16384*h + 512*i2}", "ka")
            a.dsop(f"ds_read_b64_tr_b16 {v(KA+8*h+4*i2+2,2)}, v3 offset:{16384*h + 512*i2 + 256}", "ka")
    a(f"""
    s_lshl_b32 s52, s50, 2
    s_lshl_b32 s53, s62, 1
    s_add_u32 s52, s52, s53
    s_lshl_b32 s52, s52, 5
    s_add_u32 s52, s52, s48
    s_lshl_b32 s52, s52, 10
    s_add_u32 s52, s52, {O_OFF}
    s_add_u32 s53, s52, 32768
    s_lshl_b32 s56, s50, 1
    s_add_u32 s56, s56, s62
    s_lshl_b32 s56, s56, 7
    s_add_u32 s56, s56, {FL_OFF + 4096}
    s_lshl_b32 s57, s84, 1
    s_add_u32 s57, s57, s62
    s_lshl_b32 s57, s57, 7
    s_add_u32 s57, s57, {FL_OFF + 4096}
    s_lshl_b32 s58, s48, 1
    v_mov_b32 v2, s58
    """)
    a.wait(lg="all")
    OD = 96
    for u in range(4):
        h = u & 1
        for i2 in range(2):
            a(f"{MF} {v(OD+16*u,16)}, {v(KA+8*h+4*i2,4)}, {v(OB+8*u+4*i2,4)}, {'0' if i2 == 0 else v(OD+16*u,16)}")
    def ostores(sfx):
        for u in range(4):
            d = OD + 16 * u
            a(f"v_add_f32 v{d+8}, 0x358637bd, v{d+8}\nv_rcp_f32 v{d+8}, v{d+8}")
            for q in range(4): a(f"v_pk_mul_f32 {v(d+2*q,2)}, {v(d+2*q,2)}, {v(d+8,2)} op_sel:[0,0] op_sel_hi:[1,0]")
            for q in range(4): a(f"v_cvt_pk_bf16_f32 v{d+12+q}, v{d+2*q}, v{d+2*q+1}")
            a.vmop(f"buffer_store_dwordx4 {v(d+12,4)}, v26, s[36:39], s{52 + (u>>1)} offen offset:{1024*(u&1)}{sfx}", "o")
    def between():
        a.stamp(8)
        a(f"s_lshl_b32 s58, s63, 6\nv_xor_b32 v7, s58, v{vWI}\nv_add_u32 v7, {WV_L}, v7\nv_xor_b32 v8, 64, v7")
    assert opt['bmap'] == 2 or not opt['fast']
    dual_store(a, vXF, ostores, "o", between, flag_store(vTAG, 2, 36, "s56"))
    a.stamp(9)
    poll_flags(a, vFL, 36, "s57", 4)
    a.stamp(10)
    def oload(ks):
        if ks % 4 == 0: a(f"s_add_u32 s57, s90, {ks*1024}" if not opt['rot2'] else f"s_lshl_b32 s57, s85, 12\ns_xor_b32 s57, s57, {ks*1024}\ns_add_u32 s57, s57, s90")
        a.vmop(f"buffer_load_dwordx4 {ar(4*ks,4)}, v26, s[36:39], s57 offen offset:{(ks%4)*1024}{['', ' sc1', ' sc0', ' nt'][opt['hld']]}", ("h", ks))
    for ks in range(opt['npre']): oload(ks)
    ACC = 64; FR2 = 96; D2 = 2
    def reads2(ks):
        f = FR2 + 8 * (ks % (D2 + 1))
        for n in range(2):
            for ab in range(2):
                a.dsop(f"ds_read_b64_tr_b16 {v(f+4*n+2*ab,2)}, v{7+n} offset:{ks*2048 + ab*512}", ("rd", ks))
    for ks in range(D2): reads2(ks)
    for ks in range(32):
        if ks + D2 < 32: reads2(ks + D2)
        if ks + opt['npre'] < 32: oload(ks + opt['npre'])
        a.wait(vm=("h", ks), lg=("rd", ks))
        f = FR2 + 8 * (ks % (D2 + 1))
        for n in range(2):
            a(f"{MF} {v(ACC+16*n,16)}, {ar(4*ks,4)}, {v(f+4*n,4)}, {'0' if ks == 0 else v(ACC+16*n,16)}")
    a.stamp(11)
    OUT = 128
    for r in range(16):
        o = OUT + 2 * r
        a(f"v_cvt_pk_bf16_f32 v{o+1}, v{ACC+r}, v{ACC+16+r}")
        a(f"v_lshlrev_b32 v{o}, 16, v{o+1}\nv_and_b32 v{o+1}, 0xffff0000, v{o+1}")
        a(f"s_mov_b32 s58, {(8*(r>>2) + (r&3))*4096}")
        a.vmop(f"buffer_store_dword v{o}, v{vOO}, s[40:43], s58 offen", "out")
        a.vmop(f"buffer_store_dword v{o+1}, v{vOO}, s[40:43], s58 offen offset:128", "out")
    tag_finish(a, 1, lambda L: f"s_add_u32 s48, s2, s20\ns_cmp_lg_u32 s48, 1\ns_cbranch_scc1 {L}")
    a.stamp(12)
    a.stamp_out(13)

KN = NAME + "_kernel"
a = G()
a.raw("; @launch grid=(256,1,1) block=(256,1,1) lds=163840")
a.raw(HEAD)
a.raw(kstart(KN))
a.stamp(0)
a(f"""
s_cmp_ge_u32 s2, 256
s_cbranch_scc1 L_end
v_lshrrev_b32 v2, 6, v0
v_and_b32 v1, 63, v0
s_bitcmp1_b32 s2, 0
v_readfirstlane_b32 s20, v2
s_cbranch_scc1 L_roleB
""")
role_A(a)
a.label("L_end")
a("s_endpgm")
a.label("L_roleB")
role_B(a)
a("s_endpgm")
a.raw(kd(KN, 512, 256))
lines = []
for l in a.lines: lines += l.split("\n")
lines = hazard.fix(lines, verbose=True)
open(sys.argv[1], "w").write("\n".join(lines) + "\n")
```

```python
import sys
from asmlib import *
import hazard

opt = dict(stamp=0, D=2, bmap=2, clk=0, pre=2, spin=0x40000, fast=1, pace=77, cst=0, noc=0, nomfma=0, noread=0, hld=1, rot2=0, rpace=64, touch=0, npre=12, dbg=0, ea=-1, eb=-1, er=1)
for x in sys.argv[2:]:
    k, v_ = x.split("="); opt[k] = int(v_)

H_OFF = 0
O_OFF = 4 << 20
E_OFF = 6 << 20
KV_OFF = (6 << 20) + (128 << 10)
KV_RB = 2304
KV_FLAG = 16 * KV_RB
KV_HEAD = KV_FLAG + 128
FL_OFF = 8 << 20
TAG_OFF = (8 << 20) + 65536
XF_OFF = (8 << 20) + 32768
STAMP_OFF = 64 << 20
LOG2E = 0x3fb8aa3b
INV2PI = 0x3e22f983
MF = "v_mfma_f32_32x32x16_bf16"

def v(i, n=1):
    return f"v{i}" if n == 1 else f"v[{i}:{i+n-1}]"
def ar(i, n=1):
    return f"a{i}" if n == 1 else f"a[{i}:{i+n-1}]"

class G(Asm):
    def __init__(self):
        super().__init__()
        self.vm = []; self.lg = []
    def reset(self):
        self.vm = []; self.lg = []
    def vmop(self, s, tag):
        if len(self.vm) >= 61:
            self("s_waitcnt vmcnt(60)"); del self.vm[:len(self.vm) - 60]
        self(s); self.vm.append(tag)
    def dsop(self, s, tag):
        self(s); self.lg.append(tag)
    def _cnt(self, lst, tag, mx):
        if tag not in lst: return None
        idx = max(i for i, t in enumerate(lst) if t == tag)
        n = min(len(lst) - 1 - idx, mx)
        del lst[:len(lst) - n]
        return n
    def wait(self, vm=None, lg=None):
        parts = []
        if vm is not None:
            if vm == "all": self.vm.clear(); parts.append("vmcnt(0)")
            else:
                n = self._cnt(self.vm, vm, 63)
                if n is not None: parts.append(f"vmcnt({n})")
        if lg is not None:
            if lg == "all": self.lg.clear(); parts.append("lgkmcnt(0)")
            else:
                n = self._cnt(self.lg, lg, 15)
                if n is not None: parts.append(f"lgkmcnt({n})")
        if parts: self("s_waitcnt " + " ".join(parts))
    def srd(self, b, lo, nbytes):
        self(f"s_mov_b32 s{b}, s{lo}\ns_mov_b32 s{b+1}, s{lo+1}\ns_mov_b32 s{b+2}, {nbytes}\ns_mov_b32 s{b+3}, 0x20000")
    def srd_off(self, b, lo, off, nbytes):
        self(f"s_add_u32 s{b}, s{lo}, {off}\ns_addc_u32 s{b+1}, s{lo+1}, 0\ns_mov_b32 s{b+2}, {nbytes}\ns_mov_b32 s{b+3}, 0x20000")
    def stamp(self, i):
        if opt['stamp']:
            self(f"{'s_memtime' if opt['clk'] else 's_memrealtime'} s[100:101]\ns_waitcnt lgkmcnt(0)\ns_mov_b32 s{70+i}, s100"); self.lg.clear()
    def stamp_out(self, n):
        if opt['ea'] >= 0:
            if (n == 13) != (opt['er'] == 1): return
            L = self.new_label("Lecho")
            last = 70 + n - 1
            self(f"s_sub_u32 s52, s{70+opt['eb']}, s{70+opt['ea']}\ns_lshl_b32 s52, s52, 1")
            self.label(L)
            self(f"s_memrealtime s[100:101]\ns_waitcnt lgkmcnt(0)\ns_sub_u32 s53, s100, s{last}\ns_cmp_lt_u32 s53, s52\ns_cbranch_scc1 {L}")
        elif opt['dbg']:
            L = self.new_label("Lso")
            sel = [1, 2, 4, 5, 7, 8, 9] if n == 10 else [1, 2, 3, 4, 5, 7, 10, 11, 12]
            base = 0 if n == 10 else 28
            self(f"s_lshr_b32 s52, s2, 1\ns_add_u32 s52, s52, s20\ns_cmp_lg_u32 s52, {opt['dbg']-1}\ns_cbranch_scc1 {L}\ns_cmp_lg_u32 s20, 0\ns_cbranch_scc1 {L}")
            self("s_load_dwordx2 s[52:53], s[0:1], 112\ns_waitcnt lgkmcnt(0)\nv_mov_b32 v2, 0")
            for k_, i in enumerate(sel):
                self(f"s_sub_u32 s56, s{70+i}, s70\nv_mov_b32 v3, s56\nglobal_store_dword v2, v3, s[52:53] offset:{base+4*k_}")
            self.label(L)
        elif opt['stamp']:
            L = self.new_label("Lso")
            self(f"s_cmp_lg_u32 s20, 0\ns_cbranch_scc1 {L}")
            self(f"s_lshl_b32 s52, s2, 7\ns_add_u32 s52, s52, {STAMP_OFF}\nv_mov_b32 v2, s52")
            for i in range(n):
                self(f"v_mov_b32 v3, s{70+i}\nbuffer_store_dword v3, v2, s[36:39], 0 offen offset:{4*i}")
            if opt['cst']:
                for c in range(1, 8):
                    self(f"v_mov_b32 v3, s{2+2*c}\nbuffer_store_dword v3, v2, s[36:39], 0 offen offset:{64+4*c}")
            self.label(L)
    def emit(self, it):
        if isinstance(it, str): self(it)
        elif it[0] == 'ds': self.dsop(it[1], it[2])
        elif it[0] == 'vm': self.vmop(it[1], it[2])
        elif it[0] == 'wait': self.wait(vm=it[1], lg=it[2])
def cost(it):
    if isinstance(it, str):
        c = 0
        for l in it.split("\n"):
            l = l.strip()
            if l.startswith(hazard.TRANS): c += 8
            elif l.startswith("v_mfma"): c += 8
            elif l.startswith("s_nop"): c += 4 * (int(l.split()[1]) + 1)
            elif l.startswith("s_"): c += 3
            elif l.startswith(("v_mul_f32", "v_add_f32", "v_max_f32", "v_mov", "v_xor", "v_and", "v_lshl", "v_sub")): c += 4
            else: c += 4.6
        return c
    if it[0] == 'vm': return 8 + 3 * it[1].count("\n")
    if it[0] == 'skip': return it[1]
    return 4
class Filler:
    def __init__(self, items, dma=()):
        self.items = list(items); self.credit = 0; self.dma = list(dma); self.dcredit = 0
    def run(self, a, budget, elapsed=32):
        self.credit += budget; self.dcredit += elapsed
        while self.dma and isinstance(self.dma[0], str):
            it = self.dma.pop(0); self.credit -= cost(it); a.emit(it)
        if self.dma:
            pace = opt['rpace'] if self.dma[0][2][0] == "ch" else opt['pace']
            if self.dcredit >= pace:
                it = self.dma.pop(0); self.dcredit -= pace; self.credit -= cost(it); a.emit(it)
        if not self.dma: self.dcredit = 0
        while self.items and self.credit >= cost(self.items[0]) * 0.5:
            it = self.items.pop(0); self.credit -= cost(it); a.emit(it)
            if isinstance(it, str) and it.startswith("v_mfma"): self.credit += budget + 8; self.dcredit += elapsed
        if not self.items: self.credit = 0
    def flush(self, a, dma=True):
        for it in self.items: a.emit(it)
        self.items = []
        if dma:
            for it in self.dma: a.emit(it)
            self.dma = []

def tilemap(a, kind, rb, col, rot):
    a("s_lshr_b32 s21, s2, 1\ns_and_b32 s21, s21, 3\ns_lshr_b32 s22, s2, 3")
    if kind == 2:
        a(f"""
        s_lshl_b32 s{rb}, s21, 2
        s_and_b32 s52, s22, 3
        s_add_u32 s{rb}, s{rb}, s52
        s_lshr_b32 s{col}, s22, 2
        s_lshl_b32 s{rot}, s52, 1
        s_add_u32 s{rot}, s{rot}, s{col}
        s_and_b32 s{rot}, s{rot}, 7
        """)
    else:
        a(f"""
        s_and_b32 s{rb}, s21, 1
        s_lshl_b32 s{rb}, s{rb}, 3
        s_and_b32 s52, s22, 7
        s_add_u32 s{rb}, s{rb}, s52
        s_lshr_b32 s{col}, s21, 1
        s_lshl_b32 s{col}, s{col}, 2
        s_lshr_b32 s53, s22, 3
        s_add_u32 s{col}, s{col}, s53
        s_lshl_b32 s{rot}, s53, 1
        s_add_u32 s{rot}, s{rot}, s52
        s_and_b32 s{rot}, s{rot}, 7
        """)

def dma_items(c, ldsbase, pieces, tag, wreg=58):
    kinds = {p[2] for p in pieces}
    pre = f"s_add_u32 s56, s55, {c}\ns_and_b32 s56, s56, 7"
    if 'x' in kinds: pre += "\ns_lshl_b32 s57, s56, 7"
    if 'w' in kinds: pre += f"\ns_mul_i32 s{wreg}, s56, {64*3072}"
    out = [pre]
    for (vr, sr, kind, ls, li) in pieces:
        out.append(('vm', f"s_add_u32 m0, s{ls}, {ldsbase + li}\n"
                    f"buffer_load_dwordx4 v{vr}, s[{sr}:{sr+3}], s{57 if kind == 'x' else wreg} offen lds", tag))
    return out

def ring_loop(a, S, stage, pieces, addr_regs, reads, mfmas, early, mid, extra_at, slot_budget, elapsed, endbar=False):
    D = opt['D']
    pre = min(opt['pre'], S)
    for c in range(pre):
        for it in dma_items(c, (c % S) * stage, pieces, ("ch", c)): a.emit(it)
    mid()
    fill = Filler([])
    for c in range(pre, S):
        fill.dma += dma_items(c, (c % S) * stage, pieces, ("ch", c))
    if opt['pre'] >= 9: fill.flush(a)
    a.wait(vm=("ch", 0), lg="all"); a("s_barrier")
    a.stamp(1)
    issued = S
    def need(c):
        while any((not isinstance(it, str)) and it[2] == ("ch", c) for it in fill.dma):
            a.emit(fill.dma.pop(0))
    for n in range(D): reads(n)
    for n in range(32):
        m = n + D
        if m < 32:
            if m % 4 == 0:
                c = m // 4
                need(c)
                e = early(c)
                a.wait(vm=("ch", c), lg=("all" if e else None)); a("s_barrier")
                if opt['cst']: a(f"s_memtime s[{2+2*c}:{3+2*c}]")
                delta = stage if (c % S) != 0 else -(S - 1) * stage
                for r in addr_regs:
                    a(f"v_add_u32 v{r}, {delta}, v{r}" if delta > 0 else f"v_subrev_u32 v{r}, {-delta}, v{r}")
                free_upto = c - (1 if e else 2)
                while issued < 8 and issued - S <= free_upto:
                    fill.dma += dma_items(issued, (issued % S) * stage, pieces, ("ch", issued)); issued += 1
                fill.dma += extra_at.get(c, [])
            if not opt['noread']: reads(m)
        a.wait(lg=("rd", n))
        if endbar and n == 31: a("s_barrier")
        for q in mfmas(n):
            if not opt['nomfma'] or n == 0: a(q)
            fill.run(a, slot_budget, elapsed)
    return fill

def cmul(d, x, y):
    return (f"v_mul_f32 v{d}, v{x}, v{y}\nv_mul_f32 v{d+1}, v{x}, v{y+1}\n"
            f"v_fma_f32 v{d}, -v{x+1}, v{y+1}, v{d}\nv_fma_f32 v{d+1}, v{x+1}, v{y}, v{d+1}")
def cfma(d, x, y, z):
    return (f"v_pk_fma_f32 {v(d,2)}, {v(x,2)}, {v(y,2)}, {v(z,2)} op_sel:[0,0,0] op_sel_hi:[0,1,1]\n"
            f"v_pk_fma_f32 {v(d,2)}, {v(x,2)}, {v(y,2)}, {v(d,2)} op_sel:[1,1,0] op_sel_hi:[1,0,1] neg_lo:[1,0,0]")
def pkb(d, s, sel, x, z, neg=False):
    n = " neg_lo:[1,0,0] neg_hi:[1,0,0]" if neg else ""
    return f"v_pk_fma_f32 {v(d,2)}, {v(s,2)}, {v(x,2)}, {v(z,2)} op_sel:[{sel},0,0] op_sel_hi:[{sel},1,1]{n}"

def poll_flags(a, voff, srd, soff, tmp):
    L = a.new_label("Lpf"); LD = a.new_label("Lpfd")
    a(f"s_mov_b32 s59, {opt['spin']}")
    a.label(L)
    a(f"buffer_load_dword v{tmp}, v{voff}, s[{srd}:{srd+3}], {soff} offen sc1\ns_waitcnt vmcnt(0)")
    a.vm.clear()
    a(f"v_cmp_ne_u32 vcc, s3, v{tmp}")
    a(f"s_cbranch_vccz {LD}\ns_sub_u32 s59, s59, 1\ns_cmp_eq_u32 s59, 0\ns_cbranch_scc1 {LD}\ns_sleep 1\ns_branch {L}")
    a.label(LD)
def flag_store(vtag, voff, srd, soff):
    return f"s_mov_b64 exec, 1\nbuffer_store_dword v{vtag}, v{voff}, s[{srd}:{srd+3}], {soff} offen sc1\ns_mov_b64 exec, -1"

def xcc_publish(a, role, vtmp):
    L = a.new_label("Lxp")
    a(f"""
    s_getreg_b32 s23, hwreg(HW_REG_XCC_ID)
    s_and_b32 s23, s23, 7
    s_lshl_b32 s52, s3, 3
    s_or_b32 s23, s23, s52
    s_lshl_b32 s87, s50, 7
    s_add_u32 s87, s87, {XF_OFF + 2048*role}
    s_cmp_lg_u32 s20, 0
    s_cbranch_scc1 {L}
    s_lshl_b32 s52, s51, 2
    v_mov_b32 v{vtmp}, s52
    v_mov_b32 v{vtmp+1}, s23
    """)
    a(flag_store(vtmp + 1, vtmp, 36, "s87"))
    a.label(L)
def xcc_load(vdst, vfl, vtmp):
    return ('vm', f"v_and_b32 v{vtmp}, 28, v{vfl}\nbuffer_load_dword v{vdst}, v{vtmp}, s[36:39], s87 offen sc1", "xf")
def dual_store(a, vxf, stores, tag, between, flag):
    LS = a.new_label("Lslow"); LE = a.new_label("Lsend")
    vm0, lg0 = list(a.vm), list(a.lg)
    variants = [" sc1"]
    if opt['fast']:
        a(f"v_cmp_ne_u32 vcc, s23, v{vxf}\ns_cbranch_vccnz {LS}")
        variants = ["", " sc1"]
    for k_, sfx in enumerate(variants):
        a.vm[:] = vm0; a.lg[:] = lg0
        stores(sfx)
        between()
        a.wait(vm=tag)
        a.vmop(flag.replace(" sc1", sfx), "fl")
        if len(variants) == 2 and k_ == 0:
            a(f"s_branch {LE}"); a.label(LS); a("s_nop 7\ns_nop 3")
    a.label(LE)

def tag_finish(a, role, cond):
    L = a.new_label("Ltag")
    a(cond(L))
    a(f"v_mov_b32 v2, {TAG_OFF + 128*role}\nv_mov_b32 v3, s3")
    a(flag_store(3, 2, 36, 0))
    a.label(L)

def role_A(a):
    a.reset()
    S, stage = 5, 32768
    a("""
    s_load_dwordx2 s[4:5], s[0:1], 0
    s_load_dwordx4 s[8:11], s[0:1], 24
    s_load_dwordx2 s[46:47], s[0:1], 120
    s_load_dwordx4 s[12:15], s[0:1], 8
    s_load_dwordx4 s[16:19], s[0:1], 56
    s_load_dwordx4 s[84:87], s[0:1], 40
    s_load_dwordx2 s[88:89], s[0:1], 104
    """)
    tilemap(a, 2, 50, 51, 55)
    XA, BA = 16, 20
    ACC = 64; FR = 128
    LAM, C2, L16, L32, MU, MU8, WA, WB = 24, 26, 28, 30, 32, 34, 36, 38
    T = 44
    EX = 176
    AD = 184
    a("""
    v_lshrrev_b32 v2, 5, v1
    v_lshlrev_b32 v2, 5, v2
    v_bfe_u32 v3, v1, 3, 1
    v_lshl_add_u32 v2, v3, 4, v2
    v_bfe_u32 v3, v1, 4, 1
    v_add_u32 v2, v2, v3
    v_lshlrev_b32 v2, 10, v2
    v_and_b32 v3, 7, v1
    v_lshrrev_b32 v4, 4, v1
    v_xor_b32 v3, v3, v4
    v_lshlrev_b32 v3, 4, v3
    s_lshr_b32 s52, s20, 1
    s_lshl_b32 s52, s52, 6
    s_and_b32 s53, s20, 1
    s_lshl_b32 s53, s53, 3
    s_add_u32 s52, s52, s53
    s_lshl_b32 s53, s50, 7
    s_add_u32 s52, s52, s53
    s_lshl_b32 s52, s52, 10
    v_add3_u32 v10, v2, v3, s52
    v_xor_b32 v11, 64, v10
    v_add_u32 v11, 2048, v11
    v_add_u32 v12, 4096, v10
    v_add_u32 v13, 4096, v11
    v_lshrrev_b32 v2, 3, v1
    v_lshlrev_b32 v2, 10, v2
    s_lshl_b32 s52, s51, 6
    s_lshl_b32 s53, s20, 4
    s_add_u32 s52, s52, s53
    s_lshl_b32 s52, s52, 10
    v_add3_u32 v14, v2, v3, s52
    v_xor_b32 v15, 64, v14
    v_add_u32 v15, 8192, v15
    s_lshl_b32 s60, s20, 12
    s_lshl_b32 s61, s20, 11
    v_and_b32 v9, 31, v1
    s_and_b32 s63, s20, 1
    s_lshl_b32 s63, s63, 5
    s_lshl_b32 s52, s51, 6
    s_add_u32 s52, s52, s63
    v_add_u32 v5, s52, v9
    v_lshlrev_b32 v5, 1, v5
    s_waitcnt lgkmcnt(0)
    """)
    a(f"s_add_u32 s52, s46, {TAG_OFF}\ns_addc_u32 s53, s47, 0\ns_load_dword s3, s[52:53], 0")
    a.vmop(f"global_load_ushort v{T}, v5, s[12:13]", "par")
    a.vmop(f"global_load_ushort v{T+1}, v5, s[14:15]", "par")
    a.vmop(f"global_load_ushort v{T+2}, v5, s[16:17]", "par")
    a.srd(24, 4, 2097152); a.srd(28, 8, 524288); a.srd(32, 10, 524288)
    pieces = [(10 + i, 24, 'x', 60, i * 1024) for i in range(4)] + \
             [(14 + i, 28, 'x', 61, 16384 + i * 1024) for i in range(2)] + \
             [(14 + i, 32, 'x', 61, 16384 + 8192 + i * 1024) for i in range(2)]
    SCR = 65536
    CS = [98304, 131072, 0, 32768]
    vEW, vER, vEG, vTW, vTR, vL16, vFL, vXO, vOO, vDO, vTAG, vPF, vXF, DS = range(AD, AD + 14)
    XR = 208; OUT = 224
    CR = 200
    def mid():
        a.srd(36, 46, 268435456); a.srd(40, 88, 8388608); a.srd(92, 84, 524288); a.srd(96, 86, 524288)
        a(f"s_lshl_b32 s48, s51, 14\ns_add_u32 s48, s48, {E_OFF}")
        a.srd_off(64, 46, "s48", 16384)
        a(f"""
        v_lshrrev_b32 v8, 5, v1
        v_bfe_u32 v4, v1, 1, 3
        v_xor_b32 v3, v8, v4
        v_lshlrev_b32 v3, 4, v3
        v_lshl_add_u32 v3, v9, 7, v3
        s_lshr_b32 s62, s20, 1
        s_lshl_b32 s48, s62, 13
        s_lshl_b32 s49, s63, 7
        s_add_u32 s49, s49, 16384
        """)
        for ks in range(4):
            a(f"v_xor_b32 v4, {32*ks}, v3\nv_add_u32 v{XA+ks}, s48, v4\nv_add_u32 v{BA+ks}, s49, v4")
        a(f"""
        v_add_u32 v2, s63, v9
        v_lshlrev_b32 v3, 3, v2
        v_add_u32 v{vER}, {SCR}, v3
        v_lshlrev_b32 v4, 9, v8
        s_lshl_b32 s48, s62, 10
        v_add3_u32 v{vEW}, v4, v{vER}, s48
        s_sub_u32 s54, 15, s50
        s_lshl_b32 s54, s54, 10
        v_lshlrev_b32 v{vEG}, 4, v2
        v_lshlrev_b32 v{vL16}, 4, v1
        v_and_b32 v{vFL}, 15, v1
        v_lshlrev_b32 v{vFL}, 2, v{vFL}
        """)
        a(f"""
        s_lshl_b32 s48, s20, 13
        s_add_u32 s48, s48, {SCR}
        v_lshlrev_b32 v3, 2, v8
        v_and_b32 v4, 7, v1
        v_xor_b32 v3, v3, v4
        v_lshlrev_b32 v3, 4, v3
        v_lshl_add_u32 v3, v9, 7, v3
        v_add_u32 v{vTW}, s48, v3
        v_bfe_u32 v4, v1, 2, 2
        v_lshl_add_u32 v3, v8, 3, v4
        v_lshlrev_b32 v3, 7, v3
        v_bfe_u32 v5, v1, 4, 1
        v_lshlrev_b32 v5, 1, v5
        v_bfe_u32 v6, v1, 1, 1
        v_add_u32 v5, v5, v6
        v_xor_b32 v5, v5, v4
        v_lshl_add_u32 v3, v5, 4, v3
        v_and_b32 v6, 1, v1
        v_lshl_add_u32 v3, v6, 3, v3
        v_add_u32 v{vTR}, s48, v3
        """)
        a(f"""
        s_lshl_b32 s48, s50, 2
        s_add_u32 s48, s48, s20
        s_lshl_b32 s90, s48, 16
        s_add_u32 s90, s90, {H_OFF}
        s_lshl_b32 s48, s48, 5
        v_lshl_add_u32 v2, v8, 2, s48
        s_lshl_b32 s49, s51, 7
        v_lshl_add_u32 v{vDO}, v9, 2, s49
        v_lshl_add_u32 v{vXO}, v2, 10, v{vDO}
        v_lshlrev_b32 v3, 1, v{vDO}
        v_lshl_add_u32 v{vOO}, v2, 12, v3
        v_and_b32 v3, 15, v1
        v_xor_b32 v3, v3, v8
        v_lshlrev_b32 v3, 4, v3
        v_lshl_add_u32 v3, v9, 10, v3
        """)
        for q in range(8): a(f"v_xor_b32 v{CR+q}, {32*q}, v3")
        a(f"""
        s_lshl_b32 s91, s51, 6
        s_lshl_b32 s48, s20, 4
        s_add_u32 s91, s91, s48
        s_lshl_b32 s91, s91, 10
        s_lshl_b32 s44, s20, 13
        s_and_b32 s45, s20, 1
        s_lshl_b32 s45, s45, 7
        v_lshlrev_b32 v{vPF}, 7, v1
        s_lshl_b32 s48, s51, 6
        s_and_b32 s49, s50, 3
        s_lshl_b32 s49, s49, 4
        s_add_u32 s48, s48, s49
        s_lshl_b32 s48, s48, 10
        s_lshl_b32 s49, s45, 6
        s_add_u32 s48, s48, s49
        v_add_u32 v{vPF}, s48, v{vPF}
        """)
        a.wait(vm="par")
        Lr, Li, dt = T, T + 1, T + 2
        a(f"""
        v_lshlrev_b32 v{Lr}, 16, v{Lr}
        v_lshlrev_b32 v{Li}, 16, v{Li}
        v_lshlrev_b32 v{dt}, 16, v{dt}
        v_mul_f32 v{dt}, {LOG2E}, v{dt}
        v_exp_f32 v{dt}, v{dt}
        v_cvt_pk_bf16_f32 v{dt}, v{dt}, v{dt}
        v_lshlrev_b32 v{dt}, 16, v{dt}
        v_mul_f32 v{T+3}, v{dt}, v{Lr}
        v_mul_f32 v{T+4}, v{dt}, v{Li}
        v_mul_f32 v{T+3}, {LOG2E}, v{T+3}
        v_exp_f32 v{T+3}, v{T+3}
        v_mul_f32 v{T+4}, {INV2PI}, v{T+4}
        v_rndne_f32 v{T+5}, v{T+4}
        v_sub_f32 v{T+4}, v{T+4}, v{T+5}
        v_cos_f32 v{T+5}, v{T+4}
        v_sin_f32 v{T+6}, v{T+4}
        v_mul_f32 v{LAM}, v{T+3}, v{T+5}
        v_mul_f32 v{LAM+1}, v{T+3}, v{T+6}
        v_mul_f32 v{T+3}, v{Lr}, v{Lr}
        v_fma_f32 v{T+3}, v{Li}, v{Li}, v{T+3}
        v_rcp_f32 v{T+3}, v{T+3}
        v_add_f32 v{T+4}, -1.0, v{LAM}
        v_mul_f32 v{T+5}, v{T+4}, v{Lr}
        v_fma_f32 v{T+5}, v{LAM+1}, v{Li}, v{T+5}
        v_mul_f32 v{T+6}, v{LAM+1}, v{Lr}
        v_fma_f32 v{T+6}, -v{T+4}, v{Li}, v{T+6}
        v_add_f32 v{T+3}, v{T+3}, v{T+3}
        v_mul_f32 v{C2}, v{T+5}, v{T+3}
        v_mul_f32 v{C2+1}, v{T+6}, v{T+3}
        """)
        a(cmul(T, LAM, LAM)); a(cmul(T + 2, T, T)); a(cmul(T, T + 2, T + 2)); a(cmul(L16, T, T))
        a(cmul(L32, L16, L16)); a(cmul(T + 4, L32, L32))
        a(cmul(MU, T + 4, T + 4))
        a(cmul(T, MU, MU)); a(cmul(T + 2, T, T)); a(cmul(MU8, T + 2, T + 2))
        a(f"""
        v_cmp_lt_u32 vcc, 31, v1
        v_cndmask_b32 v{T}, 1.0, v{L32}, vcc
        v_cndmask_b32 v{T+1}, 0, v{L32+1}, vcc
        v_cmp_lt_u32 vcc, 127, v0
        v_cndmask_b32 v{T+2}, 1.0, v{T+4}, vcc
        v_cndmask_b32 v{T+3}, 0, v{T+5}, vcc
        """)
        a(cmul(T + 6, T, T + 2)); a(cmul(T, T + 6, C2)); a(cmul(T + 2, T, L16))
        a(f"v_mov_b32 v{WA}, v{T}\nv_mov_b32 v{WA+1}, v{T+2}\nv_mov_b32 v{WB}, v{T+1}\nv_mov_b32 v{WB+1}, v{T+3}")
        a(f"s_waitcnt lgkmcnt(0)\ns_add_u32 s3, s3, 1\ns_max_u32 s3, s3, 1\nv_mov_b32 v{vTAG}, s3\nv_lshlrev_b32 v2, 3, v8")
        for jj in range(8):
            a(f"v_add_u32 v3, {jj+1}, v2\nv_cmp_ge_u32 vcc, s50, v3\nv_cndmask_b32 v{EX+jj}, 0, v{vTAG}, vcc")
        xcc_publish(a, 0, 2)
    D = opt['D']
    def reads(n):
        f = FR + 16 * (n % (D + 1)); ks = n % 4
        a.dsop(f"ds_read_b128 {v(f,4)}, v{XA+ks}", ("rd", n))
        a.dsop(f"ds_read_b128 {v(f+8,4)}, v{BA+ks}", ("rd", n))
        a.dsop(f"ds_read_b128 {v(f+12,4)}, v{BA+ks} offset:8192", ("rd", n))
        a.dsop(f"ds_read_b128 {v(f+4,4)}, v{XA+ks} offset:4096", ("rd", n))
    def mfmas(n):
        f = FR + 16 * (n % (D + 1))
        out = []
        for i in range(2):
            for part in range(2):
                d = ACC + 32 * part + 16 * i
                out.append(f"{MF} {v(d,16)}, {v(f+4*i,4)}, {v(f+8+4*part,4)}, {'0' if n == 0 else v(d,16)}")
        return out
    def cgroup(g):
        part, n = g >> 1, g & 1
        out = []
        for i in range(8):
            out.append(('vm', f"s_add_u32 s48, s45, {16*i}\nv_xor_b32 v{2+(i&1)}, s48, v{vL16}\n"
                        f"s_add_u32 m0, s44, {CS[g] + i*1024}\ns_add_u32 s49, s91, {i*2048 + n*1024}\n"
                        f"buffer_load_dwordx4 v{2+(i&1)}, s[{92+4*part}:{95+4*part}], s49 offen lds", ("c", g)))
        return out
    LPF = a.new_label("Lcpf"); LPF2 = a.new_label("Lcpf")
    cpf = [('vm', f"s_cmp_ge_u32 s20, 2\ns_cbranch_scc1 {LPF}\nbuffer_load_dword v4, v{vPF}, s[92:95], 0 offen\ns_branch {LPF2}\n{LPF}:\n"
                  f"buffer_load_dword v4, v{vPF}, s[96:99], 0 offen\n{LPF2}:", "pf")]
    xl = [('vm', f"global_load_dword v{DS}, v{vDO}, s[18:19]", "x")]
    for r4 in range(4):
        for r in range(4 * r4, 4 * r4 + 4):
            xl.append(('vm', f"s_mov_b32 s49, {r4*8192}\nbuffer_load_dword v{XR+r}, v{vXO}, s[24:27], s49 offen offset:{(r&3)*1024}", "x"))
    extra = {4: cpf, 5: cgroup(0), 6: cgroup(1), 7: cgroup(2) + cgroup(3)}
    if opt['noc']: extra = {}
    if opt['touch']:
        tch = [('vm', f"""s_lshl_b32 s48, s50, 2
        s_and_b32 s49, s20, 2
        s_add_u32 s48, s48, s49
        s_lshl_b32 s48, s48, 6
        s_lshl_b32 s49, s51, 2
        s_add_u32 s48, s48, s49
        s_and_b32 s49, s20, 1
        s_lshl_b32 s49, s49, 1
        s_add_u32 s48, s48, s49
        s_lshl_b32 s48, s48, 10
        s_add_u32 s48, s48, {H_OFF}
        v_and_b32 v2, 15, v1
        v_lshlrev_b32 v2, 7, v2
        v_lshrrev_b32 v3, 4, v1
        v_lshl_add_u32 v2, v3, 15, v2
        buffer_load_dword v5, v2, s[36:39], s48 offen sc1""", "tch")]
        extra[4] = extra.get(4, []) + tch
    fill = ring_loop(a, S, stage, pieces, list(range(XA, XA + 8)), reads, mfmas, lambda c: c == 7, mid, extra, 20, 36, endbar=True)
    fill.flush(a, dma=False)
    a.stamp(2)
    RE, IM = ACC, ACC + 32
    cur_r, cur_i = RE, IM
    for st in range(1, 16):
        nr = T + 4 * (st & 1); ni = nr + 2
        a(pkb(ni, LAM, 1, cur_r, IM + 2 * st))
        a(pkb(nr, LAM, 1, cur_i, RE + 2 * st, neg=True))
        a(pkb(nr, LAM, 0, cur_r, nr))
        a(pkb(ni, LAM, 0, cur_i, ni))
        cur_r, cur_i = nr, ni
    EA, EE = T + 8, T + 10
    a(f"v_mov_b32 v{EA}, v{cur_r}\nv_mov_b32 v{EA+1}, v{cur_i}\nv_mov_b32 v{EE}, v{cur_r+1}\nv_mov_b32 v{EE+1}, v{cur_i+1}")
    a(cfma(EE, L16, EA, EE))
    a.dsop(f"ds_write_b64 v{vEW}, {v(EE,2)}", "e")
    a.wait(lg="all"); a("s_barrier")
    F = FR
    for b in range(4):
        a.dsop(f"ds_read_b64 {v(F+2*b,2)}, v{vER} offset:{512*b}", "e")
    a(f"v_mov_b32 v{F+13}, s3\nv_mov_b32 v{F+15}, s3")
    a.wait(lg="all")
    a(cfma(F + 2, L32, F, F + 2)); a(cfma(F + 4, L32, F + 2, F + 4)); a(cfma(F + 6, L32, F + 4, F + 6))
    L = a.new_label("Lpub")
    a(f"v_mov_b32 v{F+12}, v{F+6}\nv_mov_b32 v{F+14}, v{F+7}")
    a(f"s_cmp_ge_u32 s20, 2\ns_cbranch_scc1 {L}\ns_mov_b32 exec_hi, 0")
    a(f"buffer_store_dwordx4 {v(F+12,4)}, v{vEG}, s[64:67], s54 offen sc1\ns_mov_b64 exec, -1")
    a.label(L)
    a.stamp(3)
    fill.flush(a)
    a.emit(xcc_load(vXF, vFL, 2))
    for it in xl: a.emit(it)
    a("s_barrier")
    a(f"""
    v_cmp_lt_u32 vcc, 31, v1
    v_cndmask_b32 v{F+8}, 0, v{F}, vcc
    v_cndmask_b32 v{F+9}, 0, v{F+1}, vcc
    v_cndmask_b32 v{F+10}, v{F+2}, v{F+4}, vcc
    v_cndmask_b32 v{F+11}, v{F+3}, v{F+5}, vcc
    v_cmp_lt_u32 vcc, 127, v0
    v_cndmask_b32 v{F+8}, v{F+8}, v{F+10}, vcc
    v_cndmask_b32 v{F+9}, v{F+9}, v{F+11}, vcc
    """)
    a(cfma(EA, L16, F + 8, EA))
    a(cmul(F + 10, C2, F + 8)); a(cmul(F + 16, C2, EA))
    PR, PI = T + 12, T + 14
    a(f"v_mov_b32 v{PR}, v{F+10}\nv_mov_b32 v{PR+1}, v{F+16}\nv_mov_b32 v{PI}, v{F+11}\nv_mov_b32 v{PI+1}, v{F+17}")
    for st in range(16):
        r_, i_ = RE + 2 * st, IM + 2 * st
        t = T + 2 * (st & 1)
        a(f"v_pk_mul_f32 {v(t,2)}, {v(C2,2)}, {v(r_,2)} op_sel:[1,0] op_sel_hi:[1,1]")
        a(f"v_pk_mul_f32 {v(r_,2)}, {v(C2,2)}, {v(r_,2)} op_sel:[0,0] op_sel_hi:[0,1]")
        a(pkb(r_, C2, 1, i_, r_, neg=True))
        a(pkb(i_, C2, 0, i_, t))
    a(f"v_lshlrev_b32 v4, 13, v8\nv_add3_u32 v4, v4, v{vEG}, s54\nv_add_u32 v4, 1024, v4\nv_add_u32 v5, 4096, v4")
    LP = a.new_label("Lpoll"); LD = a.new_label("Lpolld")
    a(f"s_mov_b32 s59, {opt['spin']}")
    a.label(LP)
    for jj in range(7, -1, -1):
        a(f"buffer_load_dwordx4 {v(F+4*jj,4)}, v{4+(jj>>2)}, s[64:67], 0 offen offset:{1024*(jj&3)} sc1")
    a("s_waitcnt vmcnt(0)"); a.vm.clear()
    a(f"v_xor_b32 v6, v{F+1}, v{EX}\nv_xor_b32 v7, v{F+3}, v{EX}")
    for jj in range(1, 8):
        a(f"v_bitop3_b32 v6, v{F+4*jj+1}, v{EX+jj}, v6 bitop3:0xbe\nv_bitop3_b32 v7, v{F+4*jj+3}, v{EX+jj}, v7 bitop3:0xbe")
    a("v_or_b32 v6, v6, v7\nv_cmp_ne_u32 vcc, 0, v6")
    a(f"s_cbranch_vccz {LD}\ns_sub_u32 s59, s59, 1\ns_cmp_eq_u32 s59, 0\ns_cbranch_scc1 {LD}\ns_branch {LP}")
    a.label(LD)
    a.stamp(4)
    for jj in range(6, -1, -1):
        d, s_ = F + 4 * jj, F + 4 * jj + 4
        a(f"v_fma_f32 v{d}, v{MU}, v{s_}, v{d}\nv_fma_f32 v{d+2}, v{MU}, v{s_+2}, v{d+2}")
        a(f"v_fma_f32 v{d}, -v{MU+1}, v{s_+2}, v{d}\nv_fma_f32 v{d+2}, v{MU+1}, v{s_}, v{d+2}")
    a(f"v_mov_b32 v{F+1}, v{F+2}\nv_mov_b32 v{F+3}, v{F+2}\nv_mov_b32 v{F+2}, v{F}")
    a(f"v_permlane32_swap_b32 v{F}, v{F+2}\nv_permlane32_swap_b32 v{F+1}, v{F+3}")
    a(cfma(F, MU8, F + 2, F))
    a(pkb(PR, F, 0, WA, PR)); a(pkb(PI, F, 0, WB, PI)); a(pkb(PR, F, 1, WB, PR, neg=True)); a(pkb(PI, F, 1, WA, PI))
    cur_r, cur_i = PR, PI
    def twrite(i):
        for part in range(2):
            ng = "-" if part else ""
            for ch in range(2):
                base = ACC + 32 * part + 16 * i + ch
                d = F + 16 * i + 8 * part + 4 * ch
                for q in range(4):
                    a(f"v_cvt_pk_bf16_f32 v{d+q}, {ng}v{base+4*q}, {ng}v{base+4*q+2}")
                a(f"v_xor_b32 v{6+ch}, {(2*ch+i)*16}, v{vTW}")
                a.dsop(f"ds_write_b128 v{6+ch}, {v(d,4)} offset:{part*4096}", "tw")
    for st in range(16):
        r_, i_ = RE + 2 * st, IM + 2 * st
        a(pkb(i_, LAM, 1, cur_r, i_))
        a(pkb(r_, LAM, 1, cur_i, r_, neg=True))
        a(pkb(r_, LAM, 0, cur_r, r_))
        a(pkb(i_, LAM, 0, cur_i, i_))
        cur_r, cur_i = r_, i_
        if st == 7: twrite(0)
    twrite(1)
    a(f"""
    s_lshl_b32 s52, s50, 2
    s_and_b32 s53, s20, 2
    s_add_u32 s52, s52, s53
    s_lshl_b32 s52, s52, 6
    s_lshl_b32 s53, s51, 2
    s_add_u32 s52, s52, s53
    s_and_b32 s53, s20, 1
    s_lshl_b32 s53, s53, 1
    s_add_u32 s52, s52, s53
    s_lshl_b32 s52, s52, 10
    s_add_u32 s52, s52, {H_OFF}
    v_xor_b32 v6, 64, v{vTR}
    """)
    a.wait(lg="all")
    G0 = ACC
    k = 0; frs = []
    for Tt in range(2):
        for part in range(2):
            for pg in range(2):
                d = G0 + 4 * k
                for ab in range(2):
                    ad = vTR if (Tt ^ ab) == 0 else 6
                    a.dsop(f"ds_read_b64_tr_b16 {v(d+2*ab,2)}, v{ad} offset:{(part*32 + 16*pg + 4*ab)*128}", ("tr", k))
                frs.append((k, d, Tt, part, pg)); k += 1
    a(f"""
    s_lshl_b32 s48, s50, 1
    s_add_u32 s48, s48, s62
    s_lshl_b32 s48, s48, 7
    s_add_u32 s48, s48, {FL_OFF}
    s_lshl_b32 s49, s51, 3
    s_lshr_b32 s53, s63, 3
    s_add_u32 s49, s49, s53
    v_mov_b32 v2, s49
    """)
    def hstores(sfx):
        for k, d, Tt, part, pg in frs:
            a(f"s_add_u32 s53, s52, {(Tt*64 + part*32)*1024}")
            a.wait(lg=("tr", k))
            a.vmop(f"buffer_store_dwordx4 {v(d,4)}, v{vL16}, s[36:39], s53 offen offset:{pg*1024}{sfx}", "h")
    def between():
        a.stamp(5)
        a("s_barrier")
    dual_store(a, vXF, hstores, "h", between, flag_store(vTAG, 2, 36, "s48"))
    a.stamp(6)
    poll_flags(a, vFL, 36, "s48", 4)
    a.stamp(7)
    def hload(ks):
        s = f"s_add_u32 s57, s90, {ks*1024}\n" if ks % 4 == 0 else ""
        if opt['rot2'] and s: s = f"s_lshl_b32 s57, s51, 13\ns_xor_b32 s57, s57, {ks*1024}\ns_add_u32 s57, s57, s90\n"
        return ('vm', s + f"buffer_load_dwordx4 {ar(4*ks,4)}, v{vL16}, s[36:39], s57 offen offset:{(ks%4)*1024}{['', ' sc1', ' sc0', ' nt'][opt['hld']]}", ("h", ks))
    NPRE = opt['npre']
    for ks in range(NPRE): a.emit(hload(ks))
    rest = [hload(ks) for ks in range(NPRE, 64)]
    a(f"v_lshlrev_b32 v28, 16, v{DS}\nv_and_b32 v29, 0xffff0000, v{DS}")
    sk = []
    for r in range(16):
        o = OUT + 2 * r
        sk += [f"v_lshlrev_b32 v{o}, 16, v{XR+r}", f"v_and_b32 v{o+1}, 0xffff0000, v{XR+r}",
               f"v_mul_f32 v{o}, v{o}, v28", f"v_mul_f32 v{o+1}, v{o+1}, v29",
               f"v_cvt_pk_bf16_f32 v{o+1}, v{o}, v{o+1}",
               f"v_lshlrev_b32 v{o}, 16, v{o+1}", f"v_and_b32 v{o+1}, 0xffff0000, v{o+1}"]
    skf = Filler(sk)
    FR2 = 96; D2 = 3
    for q in range(8): a(f"v_add_u32 v{CR+q}, {CS[0]}, v{CR+q}")
    def reads2(ks):
        f = FR2 + 8 * (ks % (D2 + 1)); pg = ks & 31
        if ks == 32:
            for q in range(8): a(f"v_subrev_u32 v{CR+q}, {CS[0]}, v{CR+q}")
        o = (pg >> 3) * 256
        a.dsop(f"ds_read_b128 {v(f,4)}, v{CR+(pg&7)} offset:{o}", ("rd", ks))
        a.dsop(f"ds_read_b128 {v(f+4,4)}, v{CR+(pg&7)} offset:{o + 32768}", ("rd", ks))
    for ks in range(D2): reads2(ks)
    for ks in range(64):
        if ks + D2 < 64: reads2(ks + D2)
        if rest: a.emit(rest.pop(0))
        a.wait(vm=("h", ks), lg=("rd", ks))
        f = FR2 + 8 * (ks % (D2 + 1))
        for n in range(2):
            a(f"{MF} {v(ACC+16*n,16)}, {ar(4*ks,4)}, {v(f+4*n,4)}, {'0' if ks == 0 else v(ACC+16*n,16)}")
            skf.run(a, 9)
    skf.flush(a)
    a.stamp(8)
    for r in range(16):
        o = OUT + 2 * r
        a(f"v_add_f32 v{o}, v{o}, v{ACC+r}\nv_add_f32 v{o+1}, v{o+1}, v{ACC+16+r}")
        a(f"s_mov_b32 s58, {(8*(r>>2) + (r&3))*4096}")
        a.vmop(f"buffer_store_dwordx2 {v(o,2)}, v{vOO}, s[40:43], s58 offen", "out")
    tag_finish(a, 0, lambda L: f"s_lshl_b32 s48, s50, 5\ns_add_u32 s48, s48, s51\ns_add_u32 s48, s48, s20\ns_cmp_lg_u32 s48, {15*32}\ns_cbranch_scc1 {L}")
    a.stamp(9)
    a.stamp_out(10)

def softmax_items(units, tmp, pk=True):
    seqs = []
    for u, (P, O) in enumerate(units):
        t = tmp + 4 * u
        s = []
        s.append(f"v_max3_f32 v{t}, v{P}, v{P+1}, v{P+2}")
        s.append(f"v_max3_f32 v{t+1}, v{P+3}, v{P+4}, v{P+5}")
        s.append(f"v_max3_f32 v{t}, v{t}, v{P+6}, v{P+7}")
        s.append(f"v_max3_f32 v{t+1}, v{t+1}, v{P+8}, v{P+9}")
        s.append(f"v_max3_f32 v{t}, v{t}, v{P+10}, v{P+11}")
        s.append(f"v_max3_f32 v{t+1}, v{t+1}, v{P+12}, v{P+13}")
        s.append(f"v_max3_f32 v{t}, v{t}, v{P+14}, v{P+15}")
        s.append(f"v_max_f32 v{t}, v{t}, v{t+1}")
        s.append(f"v_mul_f32 v{t}, s69, v{t}")
        if pk:
            for q in range(8):
                s.append(f"v_pk_fma_f32 {v(P+2*q,2)}, {v(P+2*q,2)}, s[68:69], {v(t,2)} op_sel:[0,0,0] op_sel_hi:[1,0,0]")
            for q in range(16):
                s.append(f"v_exp_f32 v{P+q}, v{P+q}")
            s.append(f"v_pk_add_f32 {v(t,2)}, {v(P,2)}, {v(P+2,2)}")
            s.append(f"v_pk_add_f32 {v(t+2,2)}, {v(P+4,2)}, {v(P+6,2)}")
            s.append(f"v_pk_add_f32 {v(t,2)}, {v(t,2)}, {v(P+8,2)}")
            s.append(f"v_pk_add_f32 {v(t+2,2)}, {v(t+2,2)}, {v(P+10,2)}")
            s.append(f"v_pk_add_f32 {v(t,2)}, {v(t,2)}, {v(P+12,2)}")
            s.append(f"v_pk_add_f32 {v(t+2,2)}, {v(t+2,2)}, {v(P+14,2)}")
            s.append(f"v_pk_add_f32 {v(t,2)}, {v(t,2)}, {v(t+2,2)}")
            s.append(f"v_add_f32 v{t}, v{t}, v{t+1}")
            s.append(f"v_rcp_f32 v{t}, v{t}")
            for q in range(8):
                s.append(f"v_pk_mul_f32 {v(P+2*q,2)}, {v(P+2*q,2)}, {v(t,2)} op_sel:[0,0] op_sel_hi:[1,0]")
        else:
            for q in range(16):
                s.append(f"v_fma_f32 v{P+q}, v{P+q}, s68, v{t}")
                s.append(f"v_exp_f32 v{P+q}, v{P+q}")
                if q == 3: s.append(f"v_add_f32 v{t+1}, v{P}, v{P+1}")
                if q == 5: s.append(f"v_add_f32 v{t+2}, v{P+2}, v{P+3}")
                if q >= 6: s.append(f"v_add_f32 v{t+1+(q&1)}, v{t+1+(q&1)}, v{P+q-2}")
            s.append(f"v_add_f32 v{t+1}, v{t+1}, v{P+14}")
            s.append(f"v_add_f32 v{t+2}, v{t+2}, v{P+15}")
            s.append(f"v_add_f32 v{t}, v{t+1}, v{t+2}")
            s.append(f"v_rcp_f32 v{t}, v{t}")
            for q in range(16):
                s.append(f"v_mul_f32 v{P+q}, v{t}, v{P+q}")
        for q in range(8):
            s.append(f"v_cvt_pk_bf16_f32 v{O+q}, v{P+2*q}, v{P+2*q+1}")
        seqs.append(s)
    out = []
    for i in range(len(seqs[0])):
        for s in seqs: out.append(s[i])
    return out

def role_B(a):
    a.reset()
    S, stage = 4, 24576
    WV_L = 98304
    WQ_L = 0
    SC_L = 65536
    a("""
    s_load_dwordx4 s[4:7], s[0:1], 72
    s_load_dwordx2 s[46:47], s[0:1], 120
    s_load_dwordx4 s[8:11], s[0:1], 88
    s_load_dwordx2 s[88:89], s[0:1], 104
    """)
    tilemap(a, opt['bmap'], 50, 51, 55)
    XA, WAD = 20, 24
    WP = 28
    a("""
    v_lshrrev_b32 v2, 3, v1
    v_and_b32 v3, 7, v1
    v_lshrrev_b32 v4, 4, v1
    v_xor_b32 v5, v3, v4
    v_lshlrev_b32 v5, 4, v5
    v_lshl_add_u32 v5, v2, 10, v5
    s_lshl_b32 s52, s50, 7
    s_lshl_b32 s53, s20, 5
    s_add_u32 s52, s52, s53
    s_lshl_b32 s52, s52, 10
    v_add_u32 v10, s52, v5
    v_xor_b32 v11, 64, v10
    v_add_u32 v11, 8192, v11
    v_add_u32 v12, 16384, v10
    v_add_u32 v13, 16384, v11
    v_and_b32 v4, 1, v4
    v_lshlrev_b32 v4, 2, v4
    v_xor_b32 v4, v3, v4
    v_lshlrev_b32 v4, 4, v4
    v_mul_u32_u24 v5, 3072, v2
    s_lshl_b32 s52, s51, 7
    s_mul_i32 s53, s20, 49152
    s_add_u32 s52, s52, s53
    v_add3_u32 v14, v4, v5, s52
    v_add_u32 v16, 1024, v14
    v_add_u32 v17, 25600, v14
    s_lshl_b32 s60, s20, 12
    s_lshl_b32 s61, s20, 11
    v_lshl_add_u32 v25, v2, 10, v4
    s_waitcnt lgkmcnt(0)
    """)
    a(f"s_add_u32 s52, s46, {TAG_OFF + 128}\ns_addc_u32 s53, s47, 0\ns_load_dword s3, s[52:53], 0")
    a.srd(24, 4, 2097152); a.srd(28, 6, 1572864)
    pieces = [(10 + i, 24, 'x', 60, i * 1024) for i in range(4)] + [(16 + i, 28, 'w', 61, 16384 + i * 1024) for i in range(2)]
    def wimg(c, base, vr, tag):
        return dma_items(c, base + c * 8192, [(vr + i, 28, 'w', 61, i * 1024) for i in range(2)], tag, wreg=96)
    KQ, V, PB, OB, WF = 64, 96, 128, 192, 224
    CV, TM = 36, 52
    vPW0, vPW1, vPR, vWI = 60, 61, 62, 63
    vKW, vKR, vXW, vXZ, vXR, vXRZ, vFL, vTAG, vOO, vXF = range(240, 250)
    vONE = 252
    def mid():
        a(f"""
        v_add_u32 v15, 24576, v14
        v_add_u32 v18, 2048, v14
        v_add_u32 v19, 2048, v15
        v_and_b32 v9, 31, v1
        v_lshrrev_b32 v8, 5, v1
        s_and_b32 s63, s20, 1
        s_lshr_b32 s62, s20, 1
        s_lshl_b32 s48, s51, 2
        s_lshl_b32 s52, s63, 1
        s_add_u32 s48, s48, s52
        s_add_u32 s49, s48, s62
        v_lshrrev_b32 v2, 3, v9
        v_and_b32 v3, 3, v9
        v_lshl_add_u32 v2, v2, 2, v3
        v_lshlrev_b32 v2, 1, v2
        v_lshl_add_u32 v2, v8, 7, v2
        s_lshl_b32 s52, s48, 9
        v_add_u32 v2, s52, v2
        """)
        for h in range(2):
            for j in range(8):
                d = 8 * (j >> 2) + (j & 3)
                a.vmop(f"global_load_ushort v{36+8*h+j}, v2, s[8:9] offset:{h*512 + d*32}", "wp")
        a.srd(36, 46, 268435456); a.srd(40, 88, 8388608); a.srd(92, 10, 524288)
        a(f"s_mul_i32 s52, s49, {KV_HEAD}\ns_add_u32 s52, s52, {KV_OFF}\ns_mul_i32 s54, s50, {KV_RB}")
        a.srd_off(64, 46, "s52", KV_HEAD)
        a(f"""
        v_lshlrev_b32 v26, 4, v1
        v_lshlrev_b32 v27, 2, v1
        s_mov_b32 s68, {LOG2E}
        s_mov_b32 s69, {LOG2E | 0x80000000}
        v_bfe_u32 v4, v1, 1, 3
        v_xor_b32 v4, v8, v4
        v_lshlrev_b32 v4, 4, v4
        v_lshl_add_u32 v4, v9, 7, v4
        s_lshl_b32 s52, s62, 13
        """)
        for ks in range(4):
            a(f"v_xor_b32 v5, {32*ks}, v4\nv_add_u32 v{XA+ks}, s52, v5")
        a(f"""
        v_bfe_u32 v4, v1, 2, 2
        v_lshl_add_u32 v5, v8, 3, v4
        v_lshlrev_b32 v5, 7, v5
        v_lshrrev_b32 v6, 1, v4
        v_xor_b32 v6, s63, v6
        v_lshl_add_u32 v5, v6, 6, v5
        v_bfe_u32 v6, v1, 4, 1
        v_lshl_add_u32 v5, v6, 5, v5
        v_and_b32 v3, 3, v1
        v_lshl_add_u32 v{vWI}, v3, 3, v5
        v_add_u32 v{WAD}, 16384, v{vWI}
        v_lshlrev_b32 v7, 1, v6
        v_bfe_u32 v2, v1, 1, 1
        v_add_u32 v7, v7, v2
        s_lshl_b32 s52, s20, 13
        s_add_u32 s52, s52, {SC_L}
        v_lshlrev_b32 v3, 1, v8
        v_bfe_u32 v5, v1, 1, 2
        v_xor_b32 v6, v3, v5
        v_lshlrev_b32 v6, 4, v6
        v_lshl_add_u32 v6, v9, 6, v6
        v_add_u32 v{vPW0}, s52, v6
        v_xor_b32 v{vPW1}, 16, v{vPW0}
        v_lshl_add_u32 v6, v8, 2, v4
        v_lshrrev_b32 v2, 1, v6
        v_xor_b32 v2, v2, v7
        v_lshlrev_b32 v2, 4, v2
        v_lshl_add_u32 v2, v6, 6, v2
        v_and_b32 v3, 1, v1
        v_lshl_add_u32 v2, v3, 3, v2
        v_add_u32 v{vPR}, s52, v2
        v_add_u32 v{vXW}, s52, v26
        v_add_u32 v{vXZ}, s52, v27
        v_xor_b32 v{vXR}, 16384, v{vXW}
        v_xor_b32 v{vXRZ}, 16384, v{vXZ}
        """)
        a(f"""
        v_xor_b32 v6, v8, v5
        v_lshlrev_b32 v6, 4, v6
        v_lshl_add_u32 v6, v9, 6, v6
        s_add_u32 s53, s52, 4096
        v_add_u32 v{vKW}, s53, v6
        v_lshl_add_u32 v6, v8, 4, v4
        v_lshlrev_b32 v6, 6, v6
        v_lshrrev_b32 v2, 1, v4
        v_xor_b32 v2, v2, v7
        v_lshl_add_u32 v6, v2, 4, v6
        v_lshl_add_u32 v6, v3, 3, v6
        s_lshl_b32 s53, s63, 13
        s_add_u32 s53, s53, {SC_L + 4096}
        v_add_u32 v{vKR}, s53, v6
        v_and_b32 v{vFL}, 15, v1
        v_lshlrev_b32 v{vFL}, 2, v{vFL}
        """)
        for q in range(4): a(f"v_mov_b32 v{vONE+q}, 0x3f803f80")
        tilemap(a, 2, 84, 85, 86)
        a(f"""
        s_lshl_b32 s52, s84, 2
        s_add_u32 s52, s52, s20
        s_lshl_b32 s90, s52, 15
        s_add_u32 s90, s90, {O_OFF}
        s_lshl_b32 s52, s52, 5
        v_lshl_add_u32 v2, v8, 2, s52
        s_lshl_b32 s53, s85, 8
        s_add_u32 s53, s53, 2048
        v_lshl_add_u32 v3, v9, 2, s53
        v_lshl_add_u32 v{vOO}, v2, 12, v3
        s_lshl_b32 s91, s85, 7
        s_lshl_b32 s52, s20, 13
        s_add_u32 s91, s91, s52
        s_lshl_b32 s44, s20, 10
        s_and_b32 s45, s84, 3
        s_lshl_b32 s45, s45, 2
        s_waitcnt lgkmcnt(0)
        s_add_u32 s3, s3, 1
        s_max_u32 s3, s3, 1
        v_mov_b32 v{vTAG}, s3
        """)
        xcc_publish(a, 1, 2)
    D = opt['D']
    def reads(n):
        ks = n % 4; f = WF + 4 * (n % (D + 1))
        a.dsop(f"ds_read_b128 {ar(8*n,4)}, v{XA+ks}", ("rd", n))
        for ab in range(2):
            a.dsop(f"ds_read_b64_tr_b16 {v(f+2*ab,2)}, v{WAD} offset:{ks*2048 + ab*512}", ("rd", n))
        a.dsop(f"ds_read_b128 {ar(8*n+4,4)}, v{XA+ks} offset:4096", ("rd", n))
    def mfmas(n):
        f = WF + 4 * (n % (D + 1))
        return [f"{MF} {v(KQ+16*i,16)}, {v(f,4)}, {ar(8*n+4*i,4)}, {'0' if n == 0 else v(KQ+16*i,16)}" for i in range(2)]
    wv = []
    for c in range(8): wv += wimg(c, WV_L, 18, ("wv", c >> 1))
    extra = {4: wv}
    if opt['touch']:
        extra[4] = wv + [('vm', f"""s_lshl_b32 s52, s50, 2
        s_lshl_b32 s53, s62, 1
        s_add_u32 s52, s52, s53
        s_lshl_b32 s52, s52, 5
        s_add_u32 s52, s52, s48
        s_lshl_b32 s52, s52, 10
        s_add_u32 s52, s52, {O_OFF}
        v_and_b32 v2, 15, v1
        v_lshlrev_b32 v2, 7, v2
        v_bfe_u32 v3, v1, 4, 1
        v_lshl_add_u32 v2, v3, 15, v2
        buffer_load_dword v5, v2, s[36:39], s52 offen sc1""", "tch")]
    fill = ring_loop(a, S, stage, pieces, list(range(XA, XA + 5)), reads, mfmas, lambda c: True, mid, extra, 40, 56)
    fill.flush(a)
    a.stamp(2)
    DW = 3
    def wpass(base, tiles, acc, xfirst, fill, bars, budget):
        a(f"v_add_u32 v{WAD}, {base}, v{vWI}")
        key = (base, tuple(tiles))
        def rd(n):
            if n in bars:
                bars[n]()
            f = WF + 4 * (n % (DW + 1))
            for ab in range(2):
                a.dsop(f"ds_read_b64_tr_b16 {v(f+2*ab,2)}, v{WAD} offset:{n*2048 + ab*512}", ("rw", key, n))
        for n in range(DW): rd(n)
        for n in range(32):
            if n + DW < 32: rd(n + DW)
            a.wait(lg=("rw", key, n))
            f = WF + 4 * (n % (DW + 1))
            for i in tiles:
                x, w = ar(8 * n + 4 * i, 4), v(f, 4)
                A_, B_ = (x, w) if xfirst else (w, x)
                a(f"{MF} {v(acc+16*i,16)}, {A_}, {B_}, {'0' if n == 0 else v(acc+16*i,16)}")
                fill.run(a, budget)
    def phi_items(src, tiles):
        out = []
        for i in tiles:
            for h in range(2):
                u = 2 * i + h
                for q in range(4):
                    out.append(f"v_cvt_pk_bf16_f32 v{CV+4*u+q}, v{src+16*i+8*h+2*q}, v{src+16*i+8*h+2*q+1}")
        for i in tiles:
            for h in range(2):
                u = 2 * i + h
                out.append(f"{MF} {v(PB+16*u,16)}, {v(WP+4*h,4)}, {v(CV+4*u,4)}, 0")
        return out
    a.wait(vm="wp")
    a("v_bfe_u32 v2, v1, 2, 1\nv_mul_u32_u24 v2, 0x8000, v2\nv_lshl_or_b32 v2, v2, 16, v2")
    for r in range(8):
        a(f"v_lshl_or_b32 v{WP+r}, v{36+2*r+1}, 16, v{36+2*r}\nv_xor_b32 v{WP+r}, v2, v{WP+r}")
    items = phi_items(KQ, (0, 1))
    wq = []
    for c in range(8): wq += wimg(c, WQ_L, 14, "wq")
    PF = KQ
    ZD = PB + 32
    for pr in range(2):
        items += softmax_items([(PB + 16 * u, OB + 8 * u) for u in (2 * pr, 2 * pr + 1)], TM, pk=False)
        for u in (2 * pr, 2 * pr + 1):
            items.append(('ds', f"ds_write_b128 v{vPW0}, {v(OB+8*u,4)} offset:{2048*u}", ("pw", pr)))
            items.append(('ds', f"ds_write_b128 v{vPW1}, {v(OB+8*u+4,4)} offset:{2048*u}", ("pw", pr)))
        for u in (2 * pr, 2 * pr + 1):
            for i2 in range(2):
                for ab in range(2):
                    items.append(('ds', f"ds_read_b64_tr_b16 {v(PF+8*u+4*i2+2*ab,2)}, v{vPR} offset:{2048*u + (16*i2+8*ab)*64}", ("pf", u)))
    for u in range(4):
        i, h = u >> 1, u & 1
        items.append(('wait', None, ("pf", u)))
        for i2 in range(2):
            first = (i == 0 and i2 == 0)
            items.append(f"{MF} {v(ZD+16*h,16)}, {v(vONE,4)}, {v(PF+8*u+4*i2,4)}, {'0' if first else v(ZD+16*h,16)}")
    fill = Filler(items, wq)
    def wvbar(q):
        def f():
            a.wait(vm=("wv", q), lg=("all" if q == 0 else None)); a("s_barrier")
        return f
    wpass(WV_L, (0, 1), V, True, fill, {8 * q: wvbar(q) for q in range(4)}, 21)
    fill.flush(a)
    a.stamp(3)
    for i in range(2):
        for q in range(8):
            a(f"v_cvt_pk_bf16_f32 v{V+16*i+q}, v{V+16*i+2*q}, v{V+16*i+2*q+1}")
    KVD = PB
    for u in range(4):
        i, h = u >> 1, u & 1
        for i2 in range(2):
            first = (i == 0 and i2 == 0)
            a(f"{MF} {v(KVD+16*h,16)}, {v(V+16*i+4*i2,4)}, {v(PF+8*u+4*i2,4)}, {'0' if first else v(KVD+16*h,16)}")
    KP, RC = OB, OB + 12
    L1 = a.new_label("Lx"); L2 = a.new_label("Lx")
    a(f"s_cmp_eq_u32 s62, 0\ns_cbranch_scc1 {L1}")
    def xch(give, gz, keep, kz):
        a(f"ds_write_b32 v{vXZ}, v{gz} offset:2048\nv_mov_b32 v{KP+8}, v{kz}\ns_nop 7")
        a(f"ds_write_b128 v{vXW}, {v(give,4)}\nds_write_b128 v{vXW}, {v(give+4,4)} offset:1024")
        for q in range(8): a(f"v_mov_b32 v{KP+q}, v{keep+q}")
    xch(KVD, ZD, KVD + 24, ZD + 16)
    a(f"s_branch {L2}")
    a.label(L1)
    xch(KVD + 24, ZD + 16, KVD, ZD)
    a.label(L2)
    a.wait(vm="wq", lg="all"); a("s_barrier")
    a.dsop(f"ds_read_b128 {v(RC,4)}, v{vXR}", "x"); a.dsop(f"ds_read_b128 {v(RC+4,4)}, v{vXR} offset:1024", "x")
    a.dsop(f"ds_read_b32 v{RC+8}, v{vXRZ} offset:2048", "x")
    a.wait(lg="all")
    for q in range(4): a(f"v_pk_add_f32 {v(KP+2*q,2)}, {v(KP+2*q,2)}, {v(RC+2*q,2)}")
    a(f"v_add_f32 v{KP+8}, v{KP+8}, v{RC+8}")
    a.vmop(f"buffer_store_dwordx4 {v(KP,4)}, v26, s[64:67], s54 offen sc1", "pub")
    a.vmop(f"buffer_store_dwordx4 {v(KP+4,4)}, v26, s[64:67], s54 offen offset:1024 sc1", "pub")
    a.vmop(f"buffer_store_dword v{KP+8}, v27, s[64:67], s54 offen offset:2048 sc1", "pub")
    a.stamp(4)
    items = [f"s_lshl_b32 s52, s50, 2\ns_add_u32 s52, s52, {KV_FLAG}\nv_mov_b32 v2, s52"]
    items += ["s_nop 0"] * 0
    wo = []
    for i in range(16):
        wo.append(('vm', f"s_add_u32 s56, s45, {i}\ns_and_b32 s56, s56, 15\ns_lshl_b32 s57, s56, 12\ns_add_u32 s57, s57, s44\n"
                   f"s_add_u32 m0, s57, {WV_L}\ns_lshl_b32 s56, s56, 15\ns_add_u32 s56, s56, s91\n"
                   f"buffer_load_dwordx4 v25, s[92:95], s56 offen lds", "wo"))
    items += [('skip', 16)] * 14 + [('wait', "pub", None), ('vm', flag_store(vTAG, 2, 64, 0), "fl"), xcc_load(vXF, vFL, 3)]
    fill = Filler(items, wo)
    wpass(WQ_L, (0,), KQ, False, fill, {}, 16)
    fill.flush(a, dma=False)
    items = phi_items(KQ, (0,)) + softmax_items([(PB + 16 * u, OB + 8 * u) for u in (0, 1)], TM, pk=False)
    fill.items = items
    wpass(WQ_L, (1,), KQ, False, fill, {}, 17)
    fill.flush(a)
    for it in phi_items(KQ, (1,)): a.emit(it)
    a.stamp(5)
    a(f"s_mov_b32 s52, {KV_FLAG}")
    poll_flags(a, vFL, 64, "s52", 4)
    a.stamp(6)
    def gx(r):
        if r < 12: return 64 + 8 * r
        if r < 14: return 224 + 8 * (r - 12)
        return 10 + 8 * (r - 14)
    GZ = 36
    for r in range(16):
        a(f"s_mov_b32 s52, {r*KV_RB}")
        a.vmop(f"buffer_load_dwordx4 {v(gx(r),4)}, v26, s[64:67], s52 offen sc1", ("g", r))
        a.vmop(f"buffer_load_dwordx4 {v(gx(r)+4,4)}, v26, s[64:67], s52 offen offset:1024 sc1", ("g", r))
        a.vmop(f"buffer_load_dword v{GZ+r}, v27, s[64:67], s52 offen offset:2048 sc1", ("g", r))
    for it in softmax_items([(PB + 16 * u, OB + 8 * u) for u in (2, 3)], TM): a.emit(it)
    SM = 64
    for r in range(1, 16):
        a.wait(vm=("g", r))
        for q in range(4): a(f"v_pk_add_f32 {v(SM+2*q,2)}, {v(SM+2*q,2)}, {v(gx(r)+2*q,2)}")
        a(f"v_add_f32 v{GZ}, v{GZ}, v{GZ+r}")
    a.stamp(7)
    for q in range(4): a(f"v_cvt_pk_bf16_f32 v{72+q}, v{SM+2*q}, v{SM+2*q+1}")
    for q in range(4): a(f"v_cvt_pk_bf16_f32 v{76+q}, v{GZ}, v{GZ}")
    a(f"v_xor_b32 v2, 32, v{vKW}\nv_xor_b32 v3, 32, v{vKR}")
    a.dsop(f"ds_write_b128 v{vKW}, v[72:75]", "kw"); a.dsop("ds_write_b128 v2, v[76:79]", "kw")
    a.wait(lg="all"); a("s_barrier")
    KA = 80
    for h in range(2):
        for i2 in range(2):
            a.dsop(f"ds_read_b64_tr_b16 {v(KA+8*h+4*i2,2)}, v{vKR} offset:{16384*h + 512*i2}", "ka")
            a.dsop(f"ds_read_b64_tr_b16 {v(KA+8*h+4*i2+2,2)}, v3 offset:{16384*h + 512*i2 + 256}", "ka")
    a(f"""
    s_lshl_b32 s52, s50, 2
    s_lshl_b32 s53, s62, 1
    s_add_u32 s52, s52, s53
    s_lshl_b32 s52, s52, 5
    s_add_u32 s52, s52, s48
    s_lshl_b32 s52, s52, 10
    s_add_u32 s52, s52, {O_OFF}
    s_add_u32 s53, s52, 32768
    s_lshl_b32 s56, s50, 1
    s_add_u32 s56, s56, s62
    s_lshl_b32 s56, s56, 7
    s_add_u32 s56, s56, {FL_OFF + 4096}
    s_lshl_b32 s57, s84, 1
    s_add_u32 s57, s57, s62
    s_lshl_b32 s57, s57, 7
    s_add_u32 s57, s57, {FL_OFF + 4096}
    s_lshl_b32 s58, s48, 1
    v_mov_b32 v2, s58
    """)
    a.wait(lg="all")
    OD = 96
    for u in range(4):
        h = u & 1
        for i2 in range(2):
            a(f"{MF} {v(OD+16*u,16)}, {v(KA+8*h+4*i2,4)}, {v(OB+8*u+4*i2,4)}, {'0' if i2 == 0 else v(OD+16*u,16)}")
    def ostores(sfx):
        for u in range(4):
            d = OD + 16 * u
            a(f"v_add_f32 v{d+8}, 0x358637bd, v{d+8}\nv_rcp_f32 v{d+8}, v{d+8}")
            for q in range(4): a(f"v_pk_mul_f32 {v(d+2*q,2)}, {v(d+2*q,2)}, {v(d+8,2)} op_sel:[0,0] op_sel_hi:[1,0]")
            for q in range(4): a(f"v_cvt_pk_bf16_f32 v{d+12+q}, v{d+2*q}, v{d+2*q+1}")
            a.vmop(f"buffer_store_dwordx4 {v(d+12,4)}, v26, s[36:39], s{52 + (u>>1)} offen offset:{1024*(u&1)}{sfx}", "o")
    def between():
        a.stamp(8)
        a(f"s_lshl_b32 s58, s63, 6\nv_xor_b32 v7, s58, v{vWI}\nv_add_u32 v7, {WV_L}, v7\nv_xor_b32 v8, 64, v7")
    assert opt['bmap'] == 2 or not opt['fast']
    dual_store(a, vXF, ostores, "o", between, flag_store(vTAG, 2, 36, "s56"))
    a.stamp(9)
    poll_flags(a, vFL, 36, "s57", 4)
    a.stamp(10)
    def oload(ks):
        if ks % 4 == 0: a(f"s_add_u32 s57, s90, {ks*1024}" if not opt['rot2'] else f"s_lshl_b32 s57, s85, 12\ns_xor_b32 s57, s57, {ks*1024}\ns_add_u32 s57, s57, s90")
        a.vmop(f"buffer_load_dwordx4 {ar(4*ks,4)}, v26, s[36:39], s57 offen offset:{(ks%4)*1024}{['', ' sc1', ' sc0', ' nt'][opt['hld']]}", ("h", ks))
    for ks in range(opt['npre']): oload(ks)
    ACC = 64; FR2 = 96; D2 = 2
    def reads2(ks):
        f = FR2 + 8 * (ks % (D2 + 1))
        for n in range(2):
            for ab in range(2):
                a.dsop(f"ds_read_b64_tr_b16 {v(f+4*n+2*ab,2)}, v{7+n} offset:{ks*2048 + ab*512}", ("rd", ks))
    for ks in range(D2): reads2(ks)
    for ks in range(32):
        if ks + D2 < 32: reads2(ks + D2)
        if ks + opt['npre'] < 32: oload(ks + opt['npre'])
        a.wait(vm=("h", ks), lg=("rd", ks))
        f = FR2 + 8 * (ks % (D2 + 1))
        for n in range(2):
            a(f"{MF} {v(ACC+16*n,16)}, {ar(4*ks,4)}, {v(f+4*n,4)}, {'0' if ks == 0 else v(ACC+16*n,16)}")
    a.stamp(11)
    OUT = 128
    for r in range(16):
        o = OUT + 2 * r
        a(f"v_cvt_pk_bf16_f32 v{o+1}, v{ACC+r}, v{ACC+16+r}")
        a(f"v_lshlrev_b32 v{o}, 16, v{o+1}\nv_and_b32 v{o+1}, 0xffff0000, v{o+1}")
        a(f"s_mov_b32 s58, {(8*(r>>2) + (r&3))*4096}")
        a.vmop(f"buffer_store_dword v{o}, v{vOO}, s[40:43], s58 offen", "out")
        a.vmop(f"buffer_store_dword v{o+1}, v{vOO}, s[40:43], s58 offen offset:128", "out")
    tag_finish(a, 1, lambda L: f"s_add_u32 s48, s2, s20\ns_cmp_lg_u32 s48, 1\ns_cbranch_scc1 {L}")
    a.stamp(12)
    a.stamp_out(13)

KN = NAME + "_kernel"
a = G()
a.raw("; @launch grid=(256,1,1) block=(256,1,1) lds=163840")
a.raw(HEAD)
a.raw(kstart(KN))
a.stamp(0)
a(f"""
s_cmp_ge_u32 s2, 256
s_cbranch_scc1 L_end
v_lshrrev_b32 v2, 6, v0
v_and_b32 v1, 63, v0
s_bitcmp1_b32 s2, 0
v_readfirstlane_b32 s20, v2
s_cbranch_scc1 L_roleB
""")
role_A(a)
a.label("L_end")
a("s_endpgm")
a.label("L_roleB")
role_B(a)
a("s_endpgm")
a.raw(kd(KN, 512, 256))
lines = []
for l in a.lines: lines += l.split("\n")
lines = hazard.fix(lines, verbose=True)
open(sys.argv[1], "w").write("\n".join(lines) + "\n")
```
